```python
import torch

def _softmax(x, axis=-1):
    return torch.softmax(x, dim=axis)
def _gelu(x):
    return torch.nn.functional.gelu(x, approximate="tanh")
def _silu(x):
    return torch.nn.functional.silu(x)
def _sigmoid(x):
    return torch.sigmoid(x)
def _layernorm(x, axis=-1, eps=1e-5):
    m = x.mean(dim=axis, keepdim=True)
    v = x.var(dim=axis, keepdim=True, unbiased=False)
    return (x - m) / torch.sqrt(v + eps)
def _scatter_add(tgt, idx, src, axis=0):
    return tgt.clone().index_add_(axis, idx, src)
def _segment_sum(src, seg, n):
    out = torch.zeros((n,) + src.shape[1:], dtype=src.dtype)
    return out.index_add_(0, seg, src)
def _pad(x, pw):
    flat = tuple(v for pair in reversed(pw) for v in pair)
    return torch.nn.functional.pad(x, flat)

kernel_name = 'sequential_preLN__softmax_full_mha__mixer_token_mlp__prompt'

def setup_inputs():

    _w = (lambda a: (lambda t: t.to(torch.bfloat16) if t.is_floating_point() else t)(torch.as_tensor(a)))
    def _A_setup():
        B, S, D = 1, 2048, 512
        return {
            "x": _w((lambda *s: torch.randn(*s, dtype=torch.bfloat16) * 0.05)(B, S, D)),
            "wqkv": _w((lambda *s: torch.randn(*s, dtype=torch.bfloat16) * 0.05)(D, 3 * D)),
            "wo": _w((lambda *s: torch.randn(*s, dtype=torch.bfloat16) * 0.05)(D, D)),
        }
    _A_in = _A_setup()

    def _B_setup():
        B, S, D, F = 1, 2048, 512, 1792
        return {
            "x": _w((lambda *s: torch.randn(*s, dtype=torch.bfloat16) * 0.05)(B, S, D)),
            "w1": _w((lambda *s: torch.randn(*s, dtype=torch.bfloat16) * 0.8)(S, F) * (S ** -0.5)),
            "b1": _w((lambda *s: torch.randn(*s, dtype=torch.bfloat16) * 12.8)(F) * 0.02),
            "w2": _w((lambda *s: torch.randn(*s, dtype=torch.bfloat16) * 0.2)(F, S) * (F ** -0.5)),
            "b2": _w((lambda *s: torch.randn(*s, dtype=torch.bfloat16) * 3.2)(S) * 0.02),
        }
    _B_in = _B_setup()

    return {
        "A_x": _A_in["x"],
        "A_wqkv": _A_in["wqkv"],
        "A_wo": _A_in["wo"],
        "B_x": _B_in["x"],
        "B_w1": _B_in["w1"],
        "B_b1": _B_in["b1"],
        "B_w2": _B_in["w2"],
        "B_b2": _B_in["b2"],
    }

def reference(A_x, A_wqkv, A_wo, B_x, B_w1, B_b1, B_w2, B_b2):
    def _A_ref(x, wqkv, wo):
        B, S, D = x.shape
        H = 32; Dh = D // H
        qkv = (lambda x, *d: x.permute(*d))((x @ wqkv).reshape(B, S, 3, H, Dh), 2, 0, 3, 1, 4)
        q, k, v = qkv[0], qkv[1], qkv[2]
        scale = Dh ** -0.5
        scores = torch.einsum("bhqd,bhkd->bhqk", q, k) * scale
        p = _softmax(scores, axis=-1)
        o = torch.einsum("bhqk,bhkd->bhqd", p, v)
        return (lambda x, *d: x.permute(*d))(o, 0, 2, 1, 3).reshape(B, S, D) @ wo

    def _B_ref(x, w1, b1, w2, b2):
        B, S, D = x.shape
        h = _layernorm(x, axis=-1)
        u = torch.einsum("bsd,sf->bdf", h, w1) + b1
        u = _gelu(u)
        y = torch.einsum("bdf,fs->bds", u, w2) + b2
        return (lambda x, *d: x.permute(*d))(y, 0, 2, 1)

    x = A_x
    h = x + _A_ref(_layernorm(x, axis=-1), A_wqkv, A_wo)
    h2 = h + _B_ref(_layernorm(h, axis=-1), B_w1, B_b1, B_w2, B_b2)
    return h2
```

```python
class Asm:
    def __init__(self):
        self.L = []
    def __call__(self, s):
        for line in s.split("\n"):
            line = line.strip()
            if not line:
                continue
            if line.endswith(":"):
                self.L.append(line)
            else:
                self.L.append("    " + line)
    def c(self, s):
        self.L.append("    ; " + s)
    def text(self):
        return "\n".join(self.L) + "\n"

def vr(a, n=1):
    return f"v{a}" if n == 1 else f"v[{a}:{a+n-1}]"
def ar(a, n=1):
    return f"a{a}" if n == 1 else f"a[{a}:{a+n-1}]"
def sr(a, n=1):
    return f"s{a}" if n == 1 else f"s[{a}:{a+n-1}]"

def kernel_begin(a, name):
    a.L.append(f".globl {name}")
    a.L.append(".p2align 8")
    a.L.append(f".type {name},@function")
    a.L.append(f"{name}:")

def kernel_desc(name, vgpr, sgpr=96, accum=None):
    if accum is None:
        accum = (vgpr + 3) // 4 * 4
    return f""".p2align 6
.amdhsa_kernel {name}
  .amdhsa_next_free_vgpr {vgpr}
  .amdhsa_next_free_sgpr {sgpr}
  .amdhsa_accum_offset {accum}
  .amdhsa_group_segment_fixed_size 0
  .amdhsa_kernarg_size 88
  .amdhsa_user_sgpr_count 2
  .amdhsa_user_sgpr_kernarg_segment_ptr 1
  .amdhsa_system_sgpr_workgroup_id_x 1
.end_amdhsa_kernel
"""

def srd(a, d, p, nbytes, off=None):
    if off is None:
        a(f"s_mov_b32 s{d}, s{p}")
        a(f"s_mov_b32 s{d+1}, s{p+1}")
    else:
        o = hex(off) if isinstance(off, int) else off
        a(f"s_add_u32 s{d}, s{p}, {o}")
        a(f"s_addc_u32 s{d+1}, s{p+1}, 0")
    a(f"s_mov_b32 s{d+2}, {hex(nbytes)}")
    a(f"s_mov_b32 s{d+3}, 0x00020000")

import struct
def f32(x):
    return hex(struct.unpack("<I", struct.pack("<f", x))[0])
```

```python
import sys, math
from asmlib import *
NAME = "sequential_preLN__softmax_full_mha__mixer_token_mlp__prompt"
KA = dict(x=0, wqkv=8, wo=16, w1=32, b1=40, w2=48, b2=56, out=64, dbg=72, ws=80)
WS_Q, WS_KV, WS_O, WS_HN, WS_HR, WS_U, WS_ST = 0x0, 0x200000, 0x600000, 0x800000, 0xA00000, 0xC00000, 0xE00000
EPS = 1e-5
LOG2E = 1.4426950408889634

def wave_id(a, sdst, vtmp):
    a(f"v_lshrrev_b32 v{vtmp}, 6, v0")
    a("s_nop 0")
    a(f"v_readfirstlane_b32 s{sdst}, v{vtmp}")
    a("v_and_b32 v0, 63, v0")

def k1(a):
    NS = 5
    XB = NS * 24576
    kernel_begin(a, "k1_qkv_kernel")
    a("s_cmp_ge_u32 s2, 256")
    a("s_cbranch_scc1 K1_end")
    a(f"s_load_dwordx4 s[4:7], s[0:1], {KA['x']}")
    a(f"s_load_dwordx2 s[8:9], s[0:1], {KA['ws']}")
    wave_id(a, 3, 1)
    a.c("tb=s10 (0..31), hg=s11 (0..7)")
    a("""s_and_b32 s12, s2, 7
    s_lshr_b32 s13, s2, 3
    s_lshr_b32 s10, s12, 1
    s_lshl_b32 s10, s10, 3
    s_and_b32 s14, s13, 7
    s_add_u32 s10, s10, s14
    s_and_b32 s11, s12, 1
    s_lshl_b32 s11, s11, 2
    s_lshr_b32 s14, s13, 3
    s_add_u32 s11, s11, s14
    s_waitcnt lgkmcnt(0)""")
    srd(a, 16, 4, 2048 * 1024)
    srd(a, 20, 6, 512 * 3072)
    srd(a, 24, 8, 0x1000000)
    a("s_cmp_ge_u32 s3, 4")
    a("s_cbranch_scc1 K1_helper")
    a.c("compute wave: tt=s12 cg=s13")
    a("""s_and_b32 s12, s3, 1
    s_lshr_b32 s13, s3, 1
    v_and_b32 v1, 31, v0
    v_lshrrev_b32 v2, 5, v0
    s_lshl_b32 s14, s12, 5
    v_add_u32 v3, s14, v1
    v_lshrrev_b32 v4, 1, v3
    v_and_b32 v4, 7, v4
    v_xor_b32 v4, v4, v2
    v_lshlrev_b32 v4, 4, v4
    v_lshl_add_u32 v4, v3, 7, v4""")
    a(f"v_add_u32 v4, {XB}, v4")
    for j in range(1, 4):
        a(f"v_xor_b32 v{4+j}, {32*j}, v4")
    a.c("W tr address v8")
    a("""v_bfe_u32 v9, v0, 2, 2
    v_lshlrev_b32 v10, 3, v2
    v_add_u32 v10, v10, v9
    v_lshlrev_b32 v10, 7, v10
    v_bfe_u32 v11, v0, 4, 1
    v_lshlrev_b32 v11, 1, v11
    v_bfe_u32 v12, v0, 1, 1
    v_add_u32 v11, v11, v12
    s_lshl_b32 s14, s13, 2
    v_add_u32 v11, s14, v11
    v_lshrrev_b32 v12, 1, v9
    v_lshlrev_b32 v12, 2, v12
    v_xor_b32 v11, v11, v12
    v_lshl_add_u32 v10, v11, 4, v10
    v_and_b32 v12, 1, v0
    v_lshl_add_u32 v8, v12, 3, v10
    v_add_u32 v9, 49152, v8
    v_add_u32 v10, 98304, v8""")
    ACC = 16
    FR = 64
    for i in range(48):
        a(f"v_mov_b32 v{ACC+i}, 0")
    def reads(s, j, buf):
        b = FR + 16 * buf
        a(f"ds_read_b128 {vr(b,4)}, v{4+j} offset:{(s&1)*8192}")
        slot = s % NS
        areg = 8 + slot // 2
        for seg in range(3):
            for q in range(2):
                off = (slot & 1) * 24576 + seg * 8192 + j * 2048 + q * 512
                a(f"ds_read_b64_tr_b16 {vr(b+4+4*seg+2*q,2)}, v{areg} offset:{off}")
    def mfmas(buf):
        b = FR + 16 * buf
        a(f"v_mfma_f32_32x32x16_bf16 {vr(ACC,16)}, {vr(b+4,4)}, {vr(b,4)}, {vr(ACC,16)}")
        a(f"v_mfma_f32_32x32x16_bf16 {vr(ACC+16,16)}, {vr(b+8,4)}, {vr(b,4)}, {vr(ACC+16,16)}")
        a(f"v_mfma_f32_32x32x16_bf16 {vr(ACC+32,16)}, {vr(b,4)}, {vr(b+12,4)}, {vr(ACC+32,16)}")
    n = 0
    for s in range(8):
        for j in range(4):
            a("s_waitcnt lgkmcnt(0)")
            if j == 0:
                a("s_barrier")
            reads(s, j, n & 1)
            if n > 0:
                mfmas((n - 1) & 1)
            n += 1
    a("s_waitcnt lgkmcnt(0)")
    mfmas((n - 1) & 1)
    a.c("epilogue addresses: tile = tb*2+tt ; head0 = hg*4+cg*2")
    a("""s_lshl_b32 s14, s10, 1
    s_add_u32 s14, s14, s12
    s_lshl_b32 s15, s11, 2
    s_lshl_b32 s28, s13, 1
    s_add_u32 s15, s15, s28
    s_lshl_b32 s28, s15, 16
    s_lshl_b32 s29, s14, 10
    s_add_u32 s28, s28, s29
    s_add_u32 s29, s28, 0x10000
    s_lshl_b32 s30, s28, 1""")
    a(f"s_add_u32 s30, s30, {hex(WS_KV)}")
    a("s_add_u32 s31, s30, 0x20000")
    a("v_lshlrev_b32 v4, 4, v0")
    a.c("K position: swap bits 2,3 of token index")
    a("""v_bfe_u32 v5, v0, 2, 1
    v_bfe_u32 v6, v0, 3, 1
    v_and_b32 v7, 0x33, v0
    v_lshl_add_u32 v7, v5, 3, v7
    v_lshl_add_u32 v7, v6, 2, v7
    v_lshlrev_b32 v5, 4, v7""")
    a.c("V: head j=(l>>4)&1, d=l&15, ha=l>>5")
    a("""v_bfe_u32 v6, v0, 4, 1
    v_lshlrev_b32 v6, 17, v6
    v_and_b32 v7, 15, v0
    v_lshl_add_u32 v6, v7, 4, v6
    v_lshl_add_u32 v6, v2, 8, v6""")
    a(f"s_mov_b32 s32, {f32(0.25*LOG2E)}")
    a("s_nop 7")
    for i in range(16):
        a(f"v_mul_f32 v{ACC+i}, s32, v{ACC+i}")
    for i in range(24):
        a(f"v_cvt_pk_bf16_f32 v{FR+i}, v{ACC+2*i}, v{ACC+2*i+1}")
    a(f"buffer_store_dwordx4 {vr(FR,4)}, v4, s[24:27], s28 offen")
    a(f"buffer_store_dwordx4 {vr(FR+4,4)}, v4, s[24:27], s29 offen")
    a(f"buffer_store_dwordx4 {vr(FR+8,4)}, v5, s[24:27], s30 offen")
    a(f"buffer_store_dwordx4 {vr(FR+12,4)}, v5, s[24:27], s31 offen")
    a(f"buffer_store_dwordx4 {vr(FR+16,4)}, v6, s[24:27], s30 offen offset:1024")
    a(f"buffer_store_dwordx4 {vr(FR+20,4)}, v6, s[24:27], s30 offen offset:1536")
    a("s_endpgm")
    a("K1_helper:")
    X = 16
    a("""s_sub_u32 s3, s3, 4
    v_lshrrev_b32 v1, 3, v0
    v_and_b32 v2, 7, v0
    v_lshlrev_b32 v3, 4, v2
    v_lshl_add_u32 v3, v1, 10, v3
    s_lshl_b32 s12, s10, 16
    s_lshl_b32 s13, s3, 14
    s_add_u32 s12, s12, s13
    s_add_u32 s13, s12, 8192""")
    for c in range(8):
        for g in range(2):
            a(f"buffer_load_dwordx4 {vr(X+g*32+c*4,4)}, v3, s[16:19], s{12+g} offen offset:{c*128}")
    a.c("W dma voffset v4")
    a("""v_bfe_u32 v5, v1, 1, 1
    v_lshlrev_b32 v5, 2, v5
    v_xor_b32 v5, v5, v2
    v_lshlrev_b32 v5, 4, v5
    v_mul_u32_u24 v4, 3072, v1
    v_add_u32 v4, v4, v5
    s_mul_i32 s14, s3, 49152
    s_lshl_b32 s15, s11, 7
    s_add_u32 s14, s14, s15
    v_add_u32 v4, s14, v4
    v_add_u32 v5, 23552, v4
    s_lshl_b32 s15, s3, 11""")
    def wdma(s):
        slot = s % NS
        for seg in range(3):
            a(f"s_add_u32 m0, s15, {slot*24576 + seg*8192}")
            a(f"s_mov_b32 s14, {s*64*3072 + seg*1024}")
            a(f"buffer_load_dwordx4 v4, s[20:23], s14 offen lds")
            a(f"buffer_load_dwordx4 v5, s[20:23], s14 offen offset:1024 lds")
    for s in range(NS):
        wdma(s)
    a.c("clear stats granules: 1KB per WG, by helper 0")
    a("""v_mov_b32 v8, -1
    v_mov_b32 v9, -1
    v_mov_b32 v10, -1
    v_mov_b32 v11, -1
    v_lshlrev_b32 v12, 2, v0
    s_lshl_b32 s14, s2, 10
    s_lshl_b32 s28, s3, 8
    s_add_u32 s14, s14, s28""")
    a(f"s_add_u32 s14, s14, {hex(WS_ST)}")
    a("buffer_store_dword v8, v12, s[24:27], s14 offen")
    nw = NS * 6 + 1
    a.c("LDS write addresses v6 (g=0), v7 (g=1)")
    for g in range(2):
        a(f"s_lshl_b32 s14, s3, 4")
        a(f"s_add_u32 s14, s14, {8*g}")
        a(f"v_add_u32 v12, s14, v1")
        a(f"v_bfe_u32 v13, v12, 1, 3")
        a(f"v_xor_b32 v13, v13, v2")
        a(f"v_lshlrev_b32 v13, 4, v13")
        a(f"v_lshl_add_u32 v13, v12, 7, v13")
        a(f"v_add_u32 v{6+g}, {XB}, v13")
    a.c("stats: v8,v9 sums ; v10,v11 sumsq ; v12 ones")
    a("s_nop 1")
    a("""v_mov_b32 v8, 0
    v_mov_b32 v9, 0
    v_mov_b32 v10, 0
    v_mov_b32 v11, 0
    v_mov_b32 v12, 0x3f803f80""")
    for c in range(8):
        for g in range(2):
            a(f"s_waitcnt vmcnt({nw + 15 - (2*c+g)})")
            for i in range(4):
                r = X + g*32 + c*4 + i
                a(f"v_dot2c_f32_bf16 v{8+g}, v{r}, v12")
                a(f"v_dot2c_f32_bf16 v{10+g}, v{r}, v{r}")
    a("s_nop 3")
    for dpp in ("quad_perm:[1,0,3,2]", "quad_perm:[2,3,0,1]", "row_half_mirror"):
        for i in range(4):
            a(f"v_add_f32_dpp v{8+i}, v{8+i}, v{8+i} {dpp} row_mask:0xf bank_mask:0xf")
        a("s_nop 0")
    a(f"s_mov_b32 s14, {f32(1/512)}")
    a(f"s_mov_b32 s28, {f32(EPS)}")
    for g in range(2):
        a(f"v_mul_f32 v{8+g}, s14, v{8+g}")
        a(f"v_mul_f32 v{10+g}, s14, v{10+g}")
        a(f"v_fma_f32 v{10+g}, -v{8+g}, v{8+g}, v{10+g}")
        a(f"v_max_f32 v{10+g}, 0, v{10+g}")
        a(f"v_add_f32 v{10+g}, s28, v{10+g}")
        a(f"v_rsq_f32 v{10+g}, v{10+g}")
        a("s_nop 0")
        a(f"v_mul_f32 v{8+g}, v{8+g}, v{10+g}")
    T = 80
    def norm(c):
        for g in range(2):
            for i in range(4):
                r = X + g*32 + c*4 + i
                a(f"v_lshlrev_b32 v{T}, 16, v{r}")
                a(f"v_and_b32 v{T+1}, 0xffff0000, v{r}")
                a(f"v_fma_f32 v{T}, v{T}, v{10+g}, -v{8+g}")
                a(f"v_fma_f32 v{T+1}, v{T+1}, v{10+g}, -v{8+g}")
                a(f"v_cvt_pk_bf16_f32 v{r}, v{T}, v{T+1}")
            a(f"ds_write_b128 v{6+g}, {vr(X+g*32+c*4,4)} offset:{(c&1)*8192}")
    norm(0)
    issued = NS
    for s in range(8):
        allowed = 6 * (issued - 1 - s) + (1 if s < NS else 0)
        a(f"s_waitcnt vmcnt({allowed}) lgkmcnt(0)")
        a("s_barrier")
        if s >= 1 and issued < 8:
            wdma(issued); issued += 1
        if s < 7:
            norm(s + 1)
    a("K1_end:")
    a("s_endpgm")
    return kernel_desc("k1_qkv_kernel", 96), f"; @launch kernel=k1_qkv_kernel grid=(256,1,1) block=(512,1,1) lds={XB+16384}"

def k2(a):
    TS = 2064
    kernel_begin(a, "k2_attn_kernel")
    a("s_cmp_ge_u32 s2, 256")
    a("s_cbranch_scc1 K2_end")
    a(f"s_load_dwordx2 s[8:9], s[0:1], {KA['ws']}")
    wave_id(a, 3, 1)
    a.c("head=s10, qtile=s11")
    a("""s_and_b32 s12, s2, 7
    s_lshr_b32 s13, s2, 3
    s_lshl_b32 s10, s12, 2
    s_and_b32 s14, s13, 3
    s_add_u32 s10, s10, s14
    s_lshr_b32 s11, s13, 2
    s_lshl_b32 s11, s11, 3
    s_add_u32 s11, s11, s3
    v_lshlrev_b32 v1, 4, v0
    s_lshl_b32 s12, s10, 16
    s_lshl_b32 s13, s11, 10
    s_add_u32 s12, s12, s13
    s_lshl_b32 s13, s10, 17
    s_lshl_b32 s14, s3, 10
    s_add_u32 s13, s13, s14""")
    a(f"s_add_u32 s13, s13, {hex(WS_KV)}")
    a(f"""s_lshr_b32 s14, s3, 1
    s_mul_i32 s14, s14, {TS}
    s_and_b32 s15, s3, 1
    s_lshl_b32 s15, s15, 10
    s_add_u32 s14, s14, s15
    s_waitcnt lgkmcnt(0)""")
    srd(a, 24, 8, 0x1000000)
    Q = 8
    a(f"buffer_load_dwordx4 {vr(Q,4)}, v1, s[24:27], s12 offen")
    for n in range(16):
        a(f"s_add_u32 m0, s14, {n*4*TS}")
        a(f"s_nop 0")
        a(f"buffer_load_dwordx4 v1, s[24:27], s13 offen lds")
        a(f"s_add_u32 s13, s13, 8192")
    a.c("ones chunks (every wave writes the same values)")
    a(f"""v_mov_b32 v12, 0x3f803f80
    v_mov_b32 v13, 0x3f803f80
    v_mov_b32 v14, 0x3f803f80
    v_mov_b32 v15, 0x3f803f80
    v_mul_u32_u24 v2, {TS}, v0
    ds_write_b128 v2, v[12:15] offset:2048""")
    a.c("addresses: v1 K ; v2 V m0 ; v3 V m1")
    a("""v_and_b32 v4, 15, v0
    v_lshrrev_b32 v5, 5, v0
    v_lshlrev_b32 v5, 8, v5
    v_lshl_add_u32 v4, v4, 4, v5
    v_add_u32 v2, 1024, v4
    v_add_u32 v3, 1536, v4
    v_and_b32 v4, 16, v0
    v_cmp_eq_u32 vcc, 0, v4
    v_mov_b32 v5, 2048
    s_nop 0
    v_cndmask_b32 v2, v5, v2, vcc
    v_cndmask_b32 v3, v5, v3, vcc
    v_mov_b32 v7, 0xdddddddd""")
    S0, S1, O, C = 16, 32, 48, 64
    KB = [80, 84]
    VB = [88, 96]
    for i in range(16):
        a(f"v_mov_b32 v{O+i}, 0")
        a(f"v_mov_b32 v{C+i}, 0")
        a(f"v_mov_b32 v{S1+i}, 0")
    for i in range(8):
        a(f"v_mov_b32 v{VB[1]+i}, 0")
    a("s_waitcnt vmcnt(13) lgkmcnt(0)")
    a("s_barrier")
    a(f"ds_read_b128 {vr(KB[0],4)}, v1")
    a(f"ds_read_b128 {vr(KB[1],4)}, v1 offset:{TS}")
    a(f"ds_read_b128 {vr(VB[0],4)}, v2")
    a("s_waitcnt lgkmcnt(2)")
    a(f"v_mfma_f32_32x32x16_bf16 {vr(S0,16)}, {vr(KB[0],4)}, {vr(Q,4)}, {vr(C,16)}")
    a("s_mov_b32 s16, 0")
    a("s_nop 11")
    a("K2_loop:")
    for t in range(8):
        S, Sn = (S0, S1) if t % 2 == 0 else (S1, S0)
        cur, oth = t & 1, (t & 1) ^ 1
        ex = [f"v_exp_f32 v{S+i}, v{S+i}" for i in range(16)]
        a(ex[0]); a(ex[1])
        a(f"v_smfmac_f32_32x32x32_bf16 {vr(O,16)}, {vr(VB[oth]+4,4)}, {vr(Sn+8,8)}, v7")
        a(f"ds_read_b128 {vr(VB[cur]+4,4)}, v3 offset:{t*TS}")
        for e in ex[2:6]: a(e)
        a("s_waitcnt lgkmcnt(2)")
        a(f"v_mfma_f32_32x32x16_bf16 {vr(Sn,16)}, {vr(KB[oth],4)}, {vr(Q,4)}, {vr(C,16)}")
        a(f"ds_read_b128 {vr(KB[cur],4)}, v1 offset:{(t+2)*TS}")
        for e in ex[6:11]: a(e)
        a("s_waitcnt lgkmcnt(2)")
        a(f"v_smfmac_f32_32x32x32_bf16 {vr(O,16)}, {vr(VB[cur],4)}, {vr(S,8)}, v7")
        a(f"ds_read_b128 {vr(VB[oth],4)}, v2 offset:{(t+1)*TS}")
        for e in ex[11:16]: a(e)
        a("s_waitcnt lgkmcnt(2)")
    a(f"v_add_u32 v1, {8*TS}, v1")
    a(f"v_add_u32 v2, {8*TS}, v2")
    a(f"v_add_u32 v3, {8*TS}, v3")
    a("""s_cmp_lg_u32 s16, 0
    s_cbranch_scc1 K2_nobar
    s_waitcnt vmcnt(0)
    s_barrier
    K2_nobar:
    s_add_u32 s16, s16, 1
    s_cmp_lt_u32 s16, 8
    s_cbranch_scc1 K2_loop""")
    a(f"v_smfmac_f32_32x32x32_bf16 {vr(O,16)}, {vr(VB[1]+4,4)}, {vr(S1+8,8)}, v7")
    a(f"""s_lshl_b32 s12, s11, 15
    s_lshl_b32 s13, s10, 10
    s_add_u32 s12, s12, s13
    s_add_u32 s12, s12, {hex(WS_O)}
    v_lshlrev_b32 v1, 4, v0
    s_nop 10
    v_rcp_f32 v4, v{O+8}
    s_nop 0""")
    for i in range(8):
        a(f"v_mul_f32 v{O+i}, v{O+i}, v4")
    for i in range(4):
        a(f"v_cvt_pk_bf16_f32 v{8+i}, v{O+2*i}, v{O+2*i+1}")
    a("buffer_store_dwordx4 v[8:11], v1, s[24:27], s12 offen")
    a("K2_end:")
    a("s_endpgm")
    return kernel_desc("k2_attn_kernel", 104), f"; @launch kernel=k2_attn_kernel grid=(256,1,1) block=(512,1,1) lds={66*TS}"

ACC = 16
def gemm_setup(a, RS, perm):
    a(f"""s_and_b32 s13, s3, 1
    s_lshl_b32 s14, s13, 11
    v_lshlrev_b32 v1, 4, v0
    v_add_u32 v1, s14, v1
    v_lshrrev_b32 v6, 3, v0
    v_and_b32 v7, 7, v0
    v_bfe_u32 v8, v6, 1, 1
    v_lshlrev_b32 v8, 2, v8
    v_xor_b32 v7, v7, v8
    v_lshlrev_b32 v7, 4, v7
    v_mul_u32_u24 v2, {RS}, v6
    v_add_u32 v2, v2, v7
    s_mul_i32 s14, s3, {16*RS}
    s_add_u32 s14, s14, s12
    v_add_u32 v2, s14, v2
    v_add_u32 v3, {8*RS-1024}, v2
    s_lshl_b32 s14, s13, 13
    v_lshlrev_b32 v4, 4, v0
    v_add_u32 v4, s14, v4""")
    a.c("W read addr: row=4h+r', chunk")
    a("""v_bfe_u32 v6, v0, 2, 2
    v_lshrrev_b32 v7, 5, v0
    v_lshl_add_u32 v7, v7, 2, v6
    v_lshlrev_b32 v7, 7, v7""")
    if not perm:
        a("""v_bfe_u32 v8, v0, 4, 1
        v_lshlrev_b32 v8, 2, v8
        v_and_b32 v9, 3, v0
        v_add_u32 v8, v8, v9""")
    else:
        a("""v_and_b32 v8, 1, v0
        v_lshlrev_b32 v8, 2, v8
        v_bfe_u32 v9, v0, 4, 1
        v_lshl_add_u32 v8, v9, 1, v8
        v_bfe_u32 v9, v0, 1, 1
        v_add_u32 v8, v8, v9""")
    a("""s_lshr_b32 s14, s3, 1
    s_lshl_b32 s14, s14, 3
    v_add_u32 v8, s14, v8
    v_lshrrev_b32 v9, 1, v6
    v_lshlrev_b32 v9, 3, v9
    v_xor_b32 v8, v8, v9
    v_lshl_add_u32 v5, v8, 3, v7
    v_add_u32 v5, 2048, v5
    s_lshl_b32 s28, s3, 12
    s_mov_b32 s29, 0
    s_mov_b32 s30, 0""")

def gemm_dma(a, RS, slot_imm):
    a(f"s_add_u32 m0, s28, {slot_imm*16384}")
    a("s_nop 0")
    a("buffer_load_dwordx4 v1, s[16:19], s29 offen lds")
    a("buffer_load_dwordx4 v1, s[16:19], s29 offen offset:1024 lds")
    a(f"s_add_u32 m0, s28, {slot_imm*16384+2048}")
    a("s_add_u32 s29, s29, 4096")
    a("buffer_load_dwordx4 v2, s[20:23], s30 offen lds")
    a("buffer_load_dwordx4 v3, s[20:23], s30 offen offset:1024 lds")
    a(f"s_add_u32 s30, s30, {64*RS}")

def gemm_main(a, tag, RS, nstage, w_is_A):
    FR = 32
    for s in range(7):
        gemm_dma(a, RS, s)
    for i in range(16):
        a(f"v_mov_b32 v{ACC+i}, 0")
    for i in range(32):
        a(f"v_mov_b32 v{FR+32+i}, 0")
    a.c("dma slot for stage s+7 is (s+7)&7 = (s-1)&7")
    a("s_mov_b32 s31, 0")
    a(f"{tag}_loop:")
    for u in range(4):
        b = FR + 32 * (u & 1); pb = FR + 32 * ((u & 1) ^ 1)
        a("s_waitcnt vmcnt(24) lgkmcnt(0)")
        a("s_barrier")
        for j in range(4):
            a(f"ds_read_b128 {vr(b+4*j,4)}, v4 offset:{u*16384 + (j>>1)*4096 + (j&1)*1024}")
            for q in range(2):
                a(f"ds_read_b64_tr_b16 {vr(b+16+4*j+2*q,2)}, v5 offset:{u*16384 + j*4096 + q*1024}")
            A, B = (pb+16+4*j, pb+4*j) if w_is_A else (pb+4*j, pb+16+4*j)
            a(f"v_mfma_f32_32x32x16_bf16 {vr(ACC,16)}, {vr(A,4)}, {vr(B,4)}, {vr(ACC,16)}")
        if u == 0:
            a("s_xor_b32 s28, s28, 0x10000")
            gemm_dma(a, RS, 3)
            a("s_xor_b32 s28, s28, 0x10000")
        else:
            gemm_dma(a, RS, u - 1)
    a("""s_xor_b32 s28, s28, 0x10000
    v_xor_b32 v4, 0x10000, v4
    v_xor_b32 v5, 0x10000, v5
    s_add_u32 s31, s31, 4""")
    a(f"s_cmp_lt_u32 s31, {nstage}")
    a(f"s_cbranch_scc1 {tag}_loop")
    a("s_waitcnt lgkmcnt(0)")
    pb = FR + 32
    for j in range(4):
        A, B = (pb+16+4*j, pb+4*j) if w_is_A else (pb+4*j, pb+16+4*j)
        a(f"v_mfma_f32_32x32x16_bf16 {vr(ACC,16)}, {vr(A,4)}, {vr(B,4)}, {vr(ACC,16)}")

def unpack(a, dst, src):
    a(f"v_lshlrev_b32 v{dst}, 16, v{src}")
    a(f"v_and_b32 v{dst+1}, 0xffff0000, v{src}")

def k3(a):
    kernel_begin(a, "k3_proj_kernel")
    a("s_cmp_ge_u32 s2, 256")
    a("s_cbranch_scc1 K3_end")
    a(f"s_load_dwordx2 s[4:5], s[0:1], {KA['x']}")
    a(f"s_load_dwordx2 s[6:7], s[0:1], {KA['wo']}")
    a(f"s_load_dwordx2 s[8:9], s[0:1], {KA['ws']}")
    wave_id(a, 3, 1)
    a.c("tb=s10 (0..31) db=s11 (0..7)")
    a(f"""s_and_b32 s12, s2, 7
    s_lshr_b32 s13, s2, 3
    s_and_b32 s11, s13, 7
    s_lshr_b32 s13, s13, 3
    s_lshl_b32 s10, s12, 2
    s_add_u32 s10, s10, s13
    s_lshl_b32 s12, s10, 1
    s_lshr_b32 s13, s3, 1
    s_add_u32 s12, s12, s13
    s_lshl_b32 s12, s12, 15
    s_add_u32 s12, s12, {hex(WS_O)}
    s_waitcnt lgkmcnt(0)""")
    srd(a, 16, 8, 32768, "s12")
    srd(a, 20, 6, 512 * 1024)
    srd(a, 24, 8, 0x1000000)
    srd(a, 32, 4, 2048 * 1024)
    a.c("tile=s36=(tb*2+wa) ; dt=s37=(db*2+wb)")
    a("""s_and_b32 s13, s3, 1
    s_lshl_b32 s36, s10, 1
    s_add_u32 s36, s36, s13
    s_lshr_b32 s13, s3, 1
    s_lshl_b32 s37, s11, 1
    s_add_u32 s37, s37, s13
    v_and_b32 v10, 31, v0
    v_lshrrev_b32 v11, 5, v0
    v_lshlrev_b32 v12, 10, v10
    v_lshl_add_u32 v12, v11, 5, v12
    s_lshl_b32 s13, s36, 15
    s_lshl_b32 s14, s37, 6
    s_add_u32 s13, s13, s14""")
    XR = 96
    a(f"buffer_load_dwordx4 {vr(XR,4)}, v12, s[32:35], s13 offen")
    a(f"buffer_load_dwordx4 {vr(XR+4,4)}, v12, s[32:35], s13 offen offset:16")
    a("s_lshl_b32 s12, s11, 7")
    gemm_setup(a, 1024, True)
    gemm_main(a, "K3", 1024, 8, True)
    T = 32
    for i in range(8):
        unpack(a, T + 2*i, XR + i)
    a("s_nop 3")
    for i in range(16):
        a(f"v_add_f32 v{ACC+i}, v{ACC+i}, v{T+i}")
    a(f"v_add_f32 v6, v{ACC}, v{ACC+1}")
    a(f"v_mul_f32 v7, v{ACC}, v{ACC}")
    a(f"v_fmac_f32 v7, v{ACC+1}, v{ACC+1}")
    for i in range(2, 16):
        a(f"v_add_f32 v6, v6, v{ACC+i}")
        a(f"v_fmac_f32 v7, v{ACC+i}, v{ACC+i}")
    a("""v_mov_b32 v8, v6
    v_mov_b32 v9, v7
    s_nop 1
    v_permlane32_swap_b32 v6, v8
    v_permlane32_swap_b32 v7, v9
    s_nop 1
    v_add_f32 v6, v6, v8
    v_add_f32 v7, v7, v9
    v_and_b32 v7, 0x7fffffff, v7
    v_lshlrev_b32 v12, 3, v10
    s_lshl_b32 s13, s36, 12""")
    a(f"s_add_u32 s13, s13, {hex(WS_ST)}")
    a("""s_lshl_b32 s14, s37, 8
    s_add_u32 s14, s14, s13
    s_mov_b32 exec_hi, 0
    buffer_store_dwordx2 v[6:7], v12, s[24:27], s14 offen sc1
    s_mov_b32 exec_hi, -1""")
    a.c("store h residual")
    for i in range(8):
        a(f"v_cvt_pk_bf16_f32 v{T+i}, v{ACC+2*i}, v{ACC+2*i+1}")
    a(f"""s_lshl_b32 s14, s36, 15
    s_lshl_b32 s15, s37, 11
    s_add_u32 s14, s14, s15
    s_add_u32 s14, s14, {hex(WS_HR)}
    v_lshlrev_b32 v13, 4, v0""")
    a(f"buffer_store_dwordx4 {vr(T,4)}, v13, s[24:27], s14 offen")
    a(f"buffer_store_dwordx4 {vr(T+4,4)}, v13, s[24:27], s14 offen offset:1024")
    a("v_lshl_add_u32 v12, v11, 11, v12")
    P = 48
    a("s_mov_b32 s38, 200000")
    a("K3_poll:")
    for i in range(8):
        a(f"buffer_load_dwordx2 {vr(P+2*i,2)}, v12, s[24:27], s13 offen offset:{i*256} sc1")
    a("s_waitcnt vmcnt(0)")
    a(f"v_or3_b32 v6, v{P+1}, v{P+3}, v{P+5}")
    a(f"v_or3_b32 v6, v6, v{P+7}, v{P+9}")
    a(f"v_or3_b32 v6, v6, v{P+11}, v{P+13}")
    a(f"v_or_b32 v6, v6, v{P+15}")
    a("v_cmp_gt_i32 vcc, 0, v6")
    a("s_sub_u32 s38, s38, 1")
    a("s_cbranch_scc1 K3_pdone")
    a("s_cbranch_vccnz K3_poll")
    a("K3_pdone:")
    a(f"v_add_f32 v6, v{P}, v{P+2}")
    a(f"v_add_f32 v7, v{P+1}, v{P+3}")
    for i in range(2, 8):
        a(f"v_add_f32 v6, v6, v{P+2*i}")
        a(f"v_add_f32 v7, v7, v{P+2*i+1}")
    a(f"""v_mov_b32 v8, v6
    v_mov_b32 v9, v7
    s_nop 1
    v_permlane32_swap_b32 v6, v8
    v_permlane32_swap_b32 v7, v9
    s_mov_b32 s14, {f32(1/512)}
    s_mov_b32 s15, {f32(1+EPS)}
    v_add_f32 v6, v6, v8
    v_add_f32 v7, v7, v9
    v_mul_f32 v6, s14, v6
    v_mul_f32 v7, s14, v7
    v_fma_f32 v7, -v6, v6, v7
    v_max_f32 v7, 0, v7
    v_mov_b32 v8, {f32(EPS*EPS)}
    v_fma_f32 v7, v7, s15, v8
    v_rsq_f32 v7, v7
    s_nop 0
    v_mul_f32 v6, v6, v7""")
    for i in range(16):
        a(f"v_fma_f32 v{ACC+i}, v{ACC+i}, v7, -v6")
    for i in range(8):
        a(f"v_cvt_pk_bf16_f32 v{P+i}, v{ACC+2*i}, v{ACC+2*i+1}")
    a.c("transpose through wave-private LDS [32 tokens][64B]")
    a("""s_lshl_b32 s14, s3, 11
    s_add_u32 s14, s14, 0x20000
    v_lshlrev_b32 v6, 6, v10
    v_lshl_add_u32 v6, v11, 5, v6
    v_add_u32 v6, s14, v6""")
    a(f"ds_write_b128 v6, {vr(P,4)}")
    a(f"ds_write_b128 v6, {vr(P+4,4)} offset:16")
    a("""v_bfe_u32 v7, v0, 2, 2
    v_lshl_add_u32 v7, v11, 2, v7
    v_lshlrev_b32 v7, 6, v7
    v_and_b32 v8, 1, v0
    v_lshlrev_b32 v8, 2, v8
    v_bfe_u32 v9, v0, 4, 1
    v_lshl_add_u32 v8, v9, 1, v8
    v_bfe_u32 v9, v0, 1, 1
    v_add_u32 v8, v8, v9
    v_lshl_add_u32 v7, v8, 3, v7
    v_add_u32 v7, s14, v7
    s_waitcnt lgkmcnt(0)""")
    for m in range(2):
        for q in range(2):
            a(f"ds_read_b64_tr_b16 {vr(P+8+4*m+2*q,2)}, v7 offset:{m*1024+q*512}")
    a(f"""s_lshl_b32 s14, s37, 17
    s_lshl_b32 s15, s36, 11
    s_add_u32 s14, s14, s15
    s_add_u32 s14, s14, {hex(WS_HN)}
    s_waitcnt lgkmcnt(0)""")
    a(f"buffer_store_dwordx4 {vr(P+8,4)}, v13, s[24:27], s14 offen")
    a(f"buffer_store_dwordx4 {vr(P+12,4)}, v13, s[24:27], s14 offen offset:1024")
    a("K3_end:")
    a("s_endpgm")
    return kernel_desc("k3_proj_kernel", 104), f"; @launch kernel=k3_proj_kernel grid=(256,1,1) block=(256,1,1) lds={0x20000+8192}"

def k4(a):
    kernel_begin(a, "k4_mlp1_kernel")
    a("s_cmp_ge_u32 s2, 224")
    a("s_cbranch_scc1 K4_end")
    a(f"s_load_dwordx4 s[4:7], s[0:1], {KA['w1']}")
    a(f"s_load_dwordx2 s[8:9], s[0:1], {KA['ws']}")
    wave_id(a, 3, 1)
    a.c("ft=s10 (0..27) db=s11 (0..7)")
    a(f"""s_and_b32 s12, s2, 7
    s_lshr_b32 s13, s2, 3
    s_and_b32 s11, s13, 3
    s_lshr_b32 s13, s13, 2
    s_and_b32 s14, s12, 1
    s_lshl_b32 s14, s14, 2
    s_add_u32 s11, s11, s14
    s_lshr_b32 s14, s12, 1
    s_mul_i32 s10, s14, 7
    s_add_u32 s10, s10, s13
    s_lshl_b32 s12, s11, 1
    s_lshr_b32 s13, s3, 1
    s_add_u32 s12, s12, s13
    s_lshl_b32 s12, s12, 17
    s_add_u32 s12, s12, {hex(WS_HN)}
    s_waitcnt lgkmcnt(0)""")
    srd(a, 16, 8, 131072, "s12")
    srd(a, 20, 4, 2048 * 3584)
    srd(a, 24, 8, 0x1000000)
    srd(a, 32, 6, 1792 * 2)
    a("""s_lshl_b32 s12, s10, 7
    s_lshr_b32 s13, s3, 1
    s_lshl_b32 s13, s13, 6
    s_add_u32 s13, s13, s12
    v_lshrrev_b32 v11, 5, v0
    v_lshlrev_b32 v12, 3, v11""")
    XR = 96
    for g in range(4):
        a(f"buffer_load_dwordx2 {vr(XR+2*g,2)}, v12, s[32:35], s13 offen offset:{16*g}")
    gemm_setup(a, 3584, False)
    gemm_main(a, "K4", 3584, 32, True)
    T = 32
    for i in range(8):
        unpack(a, T + 2*i, XR + i)
    c0 = -2 * LOG2E * math.sqrt(2 / math.pi)
    a(f"s_mov_b32 s14, {f32(c0*0.044715)}")
    a(f"v_mov_b32 v6, {f32(c0)}")
    a("s_nop 1")
    for i in range(16):
        a(f"v_add_f32 v{ACC+i}, v{ACC+i}, v{T+i}")
    for i in range(16):
        a(f"v_mul_f32 v{T+i}, v{ACC+i}, v{ACC+i}")
    for i in range(16):
        a(f"v_fma_f32 v{T+i}, v{T+i}, s14, v6")
    for i in range(16):
        a(f"v_mul_f32 v{T+i}, v{T+i}, v{ACC+i}")
    for i in range(16):
        a(f"v_exp_f32 v{T+i}, v{T+i}")
    for i in range(16):
        a(f"v_add_f32 v{T+i}, 1.0, v{T+i}")
    for i in range(16):
        a(f"v_rcp_f32 v{T+i}, v{T+i}")
    for i in range(16):
        a(f"v_mul_f32 v{ACC+i}, v{ACC+i}, v{T+i}")
    for i in range(8):
        a(f"v_cvt_pk_bf16_f32 v{T+i}, v{ACC+2*i}, v{ACC+2*i+1}")
    a(f"""s_and_b32 s13, s3, 1
    s_lshl_b32 s14, s11, 1
    s_add_u32 s14, s14, s13
    s_mul_i32 s14, s14, {112*1024}
    s_lshl_b32 s15, s10, 12
    s_add_u32 s14, s14, s15
    s_lshr_b32 s13, s3, 1
    s_lshl_b32 s13, s13, 11
    s_add_u32 s14, s14, s13
    s_add_u32 s14, s14, {hex(WS_U)}
    v_lshlrev_b32 v13, 4, v0""")
    a(f"buffer_store_dwordx4 {vr(T,4)}, v13, s[24:27], s14 offen")
    a(f"buffer_store_dwordx4 {vr(T+4,4)}, v13, s[24:27], s14 offen offset:1024")
    a("K4_end:")
    a("s_endpgm")
    return kernel_desc("k4_mlp1_kernel", 104), f"; @launch kernel=k4_mlp1_kernel grid=(224,1,1) block=(256,1,1) lds={0x20000}"

def k5(a):
    kernel_begin(a, "k5_mlp2_kernel")
    a("s_cmp_ge_u32 s2, 256")
    a("s_cbranch_scc1 K5_end")
    a(f"s_load_dwordx4 s[4:7], s[0:1], {KA['w2']}")
    a(f"s_load_dwordx2 s[8:9], s[0:1], {KA['ws']}")
    a(f"s_load_dwordx2 s[40:41], s[0:1], {KA['out']}")
    wave_id(a, 3, 1)
    a.c("st=s10 (0..31) db=s11 (0..7)")
    a(f"""s_and_b32 s12, s2, 7
    s_lshr_b32 s13, s2, 3
    s_and_b32 s11, s13, 3
    s_lshr_b32 s13, s13, 2
    s_and_b32 s14, s12, 1
    s_lshl_b32 s14, s14, 2
    s_add_u32 s11, s11, s14
    s_lshr_b32 s14, s12, 1
    s_lshl_b32 s10, s14, 3
    s_add_u32 s10, s10, s13
    s_lshl_b32 s12, s11, 1
    s_lshr_b32 s13, s3, 1
    s_add_u32 s12, s12, s13
    s_mul_i32 s12, s12, {112*1024}
    s_add_u32 s12, s12, {hex(WS_U)}
    s_waitcnt lgkmcnt(0)""")
    srd(a, 16, 8, 112 * 1024, "s12")
    srd(a, 20, 4, 1792 * 4096)
    srd(a, 24, 8, 0x1000000)
    srd(a, 32, 6, 2048 * 2)
    srd(a, 44, 40, 2048 * 1024)
    a.c("stile=s36=st*2+wb ; dt=s37=db*2+wa")
    a(f"""s_lshr_b32 s13, s3, 1
    s_lshl_b32 s36, s10, 1
    s_add_u32 s36, s36, s13
    s_and_b32 s13, s3, 1
    s_lshl_b32 s37, s11, 1
    s_add_u32 s37, s37, s13
    v_and_b32 v10, 31, v0
    v_lshrrev_b32 v11, 5, v0
    v_lshlrev_b32 v12, 1, v10
    s_lshl_b32 s13, s36, 6
    s_lshl_b32 s14, s36, 15
    s_lshl_b32 s15, s37, 11
    s_add_u32 s14, s14, s15
    s_add_u32 s14, s14, {hex(WS_HR)}
    v_lshlrev_b32 v13, 4, v0""")
    XR = 96
    a(f"buffer_load_ushort v14, v12, s[32:35], s13 offen")
    a(f"buffer_load_dwordx4 {vr(XR,4)}, v13, s[24:27], s14 offen")
    a(f"buffer_load_dwordx4 {vr(XR+4,4)}, v13, s[24:27], s14 offen offset:1024")
    a("s_lshl_b32 s12, s10, 7")
    gemm_setup(a, 4096, False)
    gemm_main(a, "K5", 4096, 28, False)
    T = 32
    for i in range(8):
        unpack(a, T + 2*i, XR + i)
    a("v_lshlrev_b32 v14, 16, v14")
    for i in range(16):
        a(f"v_add_f32 v{T+i}, v{T+i}, v14")
    for i in range(16):
        a(f"v_add_f32 v{ACC+i}, v{ACC+i}, v{T+i}")
    for i in range(8):
        a(f"v_cvt_pk_bf16_f32 v{T+i}, v{ACC+2*i}, v{ACC+2*i+1}")
    a("""v_lshlrev_b32 v12, 10, v10
    v_lshl_add_u32 v12, v11, 5, v12
    s_lshl_b32 s13, s36, 15
    s_lshl_b32 s14, s37, 6
    s_add_u32 s13, s13, s14""")
    a(f"buffer_store_dwordx4 {vr(T,4)}, v12, s[44:47], s13 offen")
    a(f"buffer_store_dwordx4 {vr(T+4,4)}, v12, s[44:47], s13 offen offset:16")
    a("K5_end:")
    a("s_endpgm")
    return kernel_desc("k5_mlp2_kernel", 104), f"; @launch kernel=k5_mlp2_kernel grid=(256,1,1) block=(256,1,1) lds={0x20000}"

def knop(a):
    kernel_begin(a, "k0_nop_kernel")
    a("s_endpgm")
    return kernel_desc("k0_nop_kernel", 8), "; @launch kernel=k0_nop_kernel grid=(256,1,1) block=(256,1,1) lds=0"

def build(extra_nops=0):
    a = Asm()
    res = [f(a) for f in (k1, k2, k3, k4, k5)]
    launches = [r[1] for r in res]
    if extra_nops:
        r = knop(a); res.append(r)
        launches += [r[1]] * extra_nops
    hdr = "\n".join(launches) + '\n.amdgcn_target "amdgcn-amd-amdhsa--gfx950"\n.text\n'
    return hdr + a.text() + '.section .rodata,"a"\n' + "".join(r[0] for r in res)

if __name__ == "__main__":
    out = sys.argv[1] if len(sys.argv) > 1 else f"cdna_kernels/{NAME}.s"
    n = int(sys.argv[2]) if len(sys.argv) > 2 else 0
    open(out, "w").write(build(n))
```

```python
import sys, math
from asmlib import *
NAME = "sequential_preLN__softmax_full_mha__mixer_token_mlp__prompt"
KA = dict(x=0, wqkv=8, wo=16, w1=32, b1=40, w2=48, b2=56, out=64, dbg=72, ws=80)
WS_Q, WS_KV, WS_O, WS_HN, WS_HR, WS_U, WS_ST = 0x0, 0x200000, 0x600000, 0x800000, 0xA00000, 0xC00000, 0xE00000
EPS = 1e-5
LOG2E = 1.4426950408889634

import os
PF = int(os.environ.get("PF", "0"))
STAMP = int(os.environ.get("STAMP", "0"))
WS_STAMP = 0xF00000
def stamp_begin(a):
    if STAMP:
        a("s_memrealtime s[60:61]")
        a("s_memtime s[64:65]")
NMARK = [0]
def mark(a):
    if STAMP:
        i = NMARK[0]; NMARK[0] += 1
        assert i < 12
        a(f"s_memtime s[{70+2*i}:{71+2*i}]")
def stamp_end(a, kid):
    if STAMP:
        a("s_waitcnt lgkmcnt(0)")
        a("s_mov_b64 exec, 1")
        a("v_mov_b32 v99, 0")
        a("s_lshl_b32 s68, s2, 3")
        a("s_add_u32 s68, s68, s3")
        a("s_lshl_b32 s68, s68, 6")
        a(f"s_add_u32 s68, s68, {hex(WS_STAMP + 0x40000 + kid*0x20000)}")
        for i in range(NMARK[0]):
            a(f"s_sub_u32 s69, s{70+2*i}, s64")
            a(f"v_mov_b32 v100, s69")
            a(f"buffer_store_dword v100, v99, s[24:27], s68 offen offset:{4*i}")
        NMARK[0] = 0
        a("s_waitcnt vmcnt(0) lgkmcnt(0)")
        a("s_memrealtime s[62:63]")
        a("s_memtime s[66:67]")
        a("s_waitcnt lgkmcnt(0)")
        a("s_sub_u32 s66, s66, s64")
        a("s_getreg_b32 s67, hwreg(HW_REG_XCC_ID)")
        a("v_mov_b32 v100, s60")
        a("v_mov_b32 v101, s62")
        a("v_mov_b32 v102, s66")
        a("v_mov_b32 v103, s67")
        a("s_lshl_b32 s68, s2, 3")
        a("s_add_u32 s68, s68, s3")
        a("s_lshl_b32 s68, s68, 4")
        a(f"s_add_u32 s68, s68, {hex(WS_STAMP + kid*0x8000)}")
        a("v_mov_b32 v99, 0")
        a("s_mov_b64 exec, 1")
        a("buffer_store_dwordx4 v[100:103], v99, s[24:27], s68 offen")
def wave_id(a, sdst, vtmp):
    stamp_begin(a)
    a(f"v_lshrrev_b32 v{vtmp}, 6, v0")
    a("s_nop 0")
    a(f"v_readfirstlane_b32 s{sdst}, v{vtmp}")
    a("v_and_b32 v0, 63, v0")

def k1(a):
    NS = 5
    XB = NS * 24576
    kernel_begin(a, "k1_qkv_kernel")
    a("s_cmp_ge_u32 s2, 256")
    a("s_cbranch_scc1 K1_end")
    a(f"s_load_dwordx4 s[4:7], s[0:1], {KA['x']}")
    a(f"s_load_dwordx2 s[8:9], s[0:1], {KA['ws']}")
    wave_id(a, 3, 1)
    a.c("tb=s10 (0..31), hg=s11 (0..7)")
    a("""s_and_b32 s12, s2, 7
    s_lshr_b32 s13, s2, 3
    s_lshr_b32 s10, s12, 1
    s_lshl_b32 s10, s10, 3
    s_and_b32 s14, s13, 7
    s_add_u32 s10, s10, s14
    s_and_b32 s11, s12, 1
    s_lshl_b32 s11, s11, 2
    s_lshr_b32 s14, s13, 3
    s_add_u32 s11, s11, s14
    s_waitcnt lgkmcnt(0)""")
    srd(a, 16, 4, 2048 * 1024)
    srd(a, 20, 6, 512 * 3072)
    srd(a, 24, 8, 0x1000000)
    a("s_cmp_ge_u32 s3, 4")
    a("s_cbranch_scc1 K1_helper")
    a.c("compute wave: tt=s12 cg=s13")
    a("""s_and_b32 s12, s3, 1
    s_lshr_b32 s13, s3, 1
    v_and_b32 v1, 31, v0
    v_lshrrev_b32 v2, 5, v0
    s_lshl_b32 s14, s12, 5
    v_add_u32 v3, s14, v1
    v_lshrrev_b32 v4, 1, v3
    v_and_b32 v4, 7, v4
    v_xor_b32 v4, v4, v2
    v_lshlrev_b32 v4, 4, v4
    v_lshl_add_u32 v4, v3, 7, v4""")
    a(f"v_add_u32 v4, {XB}, v4")
    for j in range(1, 4):
        a(f"v_xor_b32 v{4+j}, {32*j}, v4")
    a.c("W tr address v8")
    a("""v_bfe_u32 v9, v0, 2, 2
    v_lshlrev_b32 v10, 3, v2
    v_add_u32 v10, v10, v9
    v_lshlrev_b32 v10, 7, v10
    v_bfe_u32 v11, v0, 4, 1
    v_lshlrev_b32 v11, 1, v11
    v_bfe_u32 v12, v0, 1, 1
    v_add_u32 v11, v11, v12
    s_lshl_b32 s14, s13, 2
    v_add_u32 v11, s14, v11
    v_lshrrev_b32 v12, 1, v9
    v_lshlrev_b32 v12, 2, v12
    v_xor_b32 v11, v11, v12
    v_lshl_add_u32 v10, v11, 4, v10
    v_and_b32 v12, 1, v0
    v_lshl_add_u32 v8, v12, 3, v10
    v_add_u32 v9, 49152, v8
    v_add_u32 v10, 98304, v8""")
    ACC = 16
    FR = 64
    for i in range(48):
        a(f"v_mov_b32 v{ACC+i}, 0")
    def reads(s, j, buf):
        b = FR + 16 * buf
        a(f"ds_read_b128 {vr(b,4)}, v{4+j} offset:{(s&1)*8192}")
        slot = s % NS
        areg = 8 + slot // 2
        for seg in range(3):
            for q in range(2):
                off = (slot & 1) * 24576 + seg * 8192 + j * 2048 + q * 512
                a(f"ds_read_b64_tr_b16 {vr(b+4+4*seg+2*q,2)}, v{areg} offset:{off}")
    def mfmas(buf):
        b = FR + 16 * buf
        a(f"v_mfma_f32_32x32x16_bf16 {vr(ACC,16)}, {vr(b+4,4)}, {vr(b,4)}, {vr(ACC,16)}")
        a(f"v_mfma_f32_32x32x16_bf16 {vr(ACC+16,16)}, {vr(b+8,4)}, {vr(b,4)}, {vr(ACC+16,16)}")
        a(f"v_mfma_f32_32x32x16_bf16 {vr(ACC+32,16)}, {vr(b,4)}, {vr(b+12,4)}, {vr(ACC+32,16)}")
    n = 0
    for s in range(8):
        for j in range(4):
            a("s_waitcnt lgkmcnt(0)")
            if j == 0:
                a("s_barrier")
                mark(a)
            reads(s, j, n & 1)
            if n > 0:
                mfmas((n - 1) & 1)
            n += 1
    a("s_waitcnt lgkmcnt(0)")
    mfmas((n - 1) & 1)
    mark(a)
    a.c("epilogue addresses: tile = tb*2+tt ; head0 = hg*4+cg*2")
    a("""s_lshl_b32 s14, s10, 1
    s_add_u32 s14, s14, s12
    s_lshl_b32 s15, s11, 2
    s_lshl_b32 s28, s13, 1
    s_add_u32 s15, s15, s28
    s_lshl_b32 s28, s15, 16
    s_lshl_b32 s29, s14, 10
    s_add_u32 s28, s28, s29
    s_add_u32 s29, s28, 0x10000
    s_lshl_b32 s30, s28, 1""")
    a(f"s_add_u32 s30, s30, {hex(WS_KV)}")
    a("s_add_u32 s31, s30, 0x20000")
    a("v_lshlrev_b32 v4, 4, v0")
    a.c("K position: swap bits 2,3 of token index")
    a("""v_bfe_u32 v5, v0, 2, 1
    v_bfe_u32 v6, v0, 3, 1
    v_and_b32 v7, 0x33, v0
    v_lshl_add_u32 v7, v5, 3, v7
    v_lshl_add_u32 v7, v6, 2, v7
    v_lshlrev_b32 v5, 4, v7""")
    a.c("V: head j=(l>>4)&1, d=l&15, ha=l>>5")
    a("""v_bfe_u32 v6, v0, 4, 1
    v_lshlrev_b32 v6, 17, v6
    v_and_b32 v7, 15, v0
    v_lshl_add_u32 v6, v7, 4, v6
    v_lshl_add_u32 v6, v2, 8, v6""")
    a(f"s_mov_b32 s32, {f32(0.25*LOG2E)}")
    a("s_nop 7")
    for i in range(16):
        a(f"v_mul_f32 v{ACC+i}, s32, v{ACC+i}")
    for i in range(24):
        a(f"v_cvt_pk_bf16_f32 v{FR+i}, v{ACC+2*i}, v{ACC+2*i+1}")
    a(f"buffer_store_dwordx4 {vr(FR,4)}, v4, s[24:27], s28 offen")
    a(f"buffer_store_dwordx4 {vr(FR+4,4)}, v4, s[24:27], s29 offen")
    a(f"buffer_store_dwordx4 {vr(FR+8,4)}, v5, s[24:27], s30 offen")
    a(f"buffer_store_dwordx4 {vr(FR+12,4)}, v5, s[24:27], s31 offen")
    a(f"buffer_store_dwordx4 {vr(FR+16,4)}, v6, s[24:27], s30 offen offset:1024")
    a(f"buffer_store_dwordx4 {vr(FR+20,4)}, v6, s[24:27], s30 offen offset:1536")
    stamp_end(a, 0)
    a("s_endpgm")
    a("K1_helper:")
    X = 16
    a("""s_sub_u32 s3, s3, 4
    v_lshrrev_b32 v1, 3, v0
    v_and_b32 v2, 7, v0
    v_lshlrev_b32 v3, 4, v2
    v_lshl_add_u32 v3, v1, 10, v3
    s_lshl_b32 s12, s10, 16
    s_lshl_b32 s13, s3, 14
    s_add_u32 s12, s12, s13
    s_add_u32 s13, s12, 8192""")
    for c in range(8):
        for g in range(2):
            a(f"buffer_load_dwordx4 {vr(X+g*32+c*4,4)}, v3, s[16:19], s{12+g} offen offset:{c*128}")
    a.c("W dma voffset v4")
    a("""v_bfe_u32 v5, v1, 1, 1
    v_lshlrev_b32 v5, 2, v5
    v_xor_b32 v5, v5, v2
    v_lshlrev_b32 v5, 4, v5
    v_mul_u32_u24 v4, 3072, v1
    v_add_u32 v4, v4, v5
    s_mul_i32 s14, s3, 49152
    s_lshl_b32 s15, s11, 7
    s_add_u32 s14, s14, s15
    v_add_u32 v4, s14, v4
    v_add_u32 v5, 23552, v4
    s_lshl_b32 s15, s3, 11""")
    def wdma(s):
        slot = s % NS
        for seg in range(3):
            a(f"s_add_u32 m0, s15, {slot*24576 + seg*8192}")
            a(f"s_mov_b32 s14, {s*64*3072 + seg*1024}")
            a(f"buffer_load_dwordx4 v4, s[20:23], s14 offen lds")
            a(f"buffer_load_dwordx4 v5, s[20:23], s14 offen offset:1024 lds")
    for s in range(NS):
        wdma(s)
    a.c("clear stats granules: 1KB per WG, by helper 0")
    a("""v_mov_b32 v8, -1
    v_mov_b32 v9, -1
    v_mov_b32 v10, -1
    v_mov_b32 v11, -1
    v_lshlrev_b32 v12, 2, v0
    s_lshl_b32 s14, s2, 10
    s_lshl_b32 s28, s3, 8
    s_add_u32 s14, s14, s28""")
    a(f"s_add_u32 s14, s14, {hex(WS_ST)}")
    a("buffer_store_dword v8, v12, s[24:27], s14 offen")
    nw = NS * 6 + 1
    a.c("LDS write addresses v6 (g=0), v7 (g=1)")
    for g in range(2):
        a(f"s_lshl_b32 s14, s3, 4")
        a(f"s_add_u32 s14, s14, {8*g}")
        a(f"v_add_u32 v12, s14, v1")
        a(f"v_bfe_u32 v13, v12, 1, 3")
        a(f"v_xor_b32 v13, v13, v2")
        a(f"v_lshlrev_b32 v13, 4, v13")
        a(f"v_lshl_add_u32 v13, v12, 7, v13")
        a(f"v_add_u32 v{6+g}, {XB}, v13")
    a.c("stats: v8,v9 sums ; v10,v11 sumsq ; v12 ones")
    a("s_nop 1")
    a("""v_mov_b32 v8, 0
    v_mov_b32 v9, 0
    v_mov_b32 v10, 0
    v_mov_b32 v11, 0
    v_mov_b32 v12, 0x3f803f80""")
    for c in range(8):
        for g in range(2):
            a(f"s_waitcnt vmcnt({nw + 15 - (2*c+g)})")
            for i in range(4):
                r = X + g*32 + c*4 + i
                a(f"v_dot2c_f32_bf16 v{8+g}, v{r}, v12")
                a(f"v_dot2c_f32_bf16 v{10+g}, v{r}, v{r}")
    a("s_nop 3")
    for dpp in ("quad_perm:[1,0,3,2]", "quad_perm:[2,3,0,1]", "row_half_mirror"):
        for i in range(4):
            a(f"v_add_f32_dpp v{8+i}, v{8+i}, v{8+i} {dpp} row_mask:0xf bank_mask:0xf")
        a("s_nop 0")
    a(f"s_mov_b32 s14, {f32(1/512)}")
    a(f"s_mov_b32 s28, {f32(EPS)}")
    for g in range(2):
        a(f"v_mul_f32 v{8+g}, s14, v{8+g}")
        a(f"v_mul_f32 v{10+g}, s14, v{10+g}")
        a(f"v_fma_f32 v{10+g}, -v{8+g}, v{8+g}, v{10+g}")
        a(f"v_max_f32 v{10+g}, 0, v{10+g}")
        a(f"v_add_f32 v{10+g}, s28, v{10+g}")
        a(f"v_rsq_f32 v{10+g}, v{10+g}")
        a("s_nop 0")
        a(f"v_mul_f32 v{8+g}, v{8+g}, v{10+g}")
    T = 80
    def norm(c):
        for g in range(2):
            for i in range(4):
                r = X + g*32 + c*4 + i
                a(f"v_lshlrev_b32 v{T}, 16, v{r}")
                a(f"v_and_b32 v{T+1}, 0xffff0000, v{r}")
                a(f"v_fma_f32 v{T}, v{T}, v{10+g}, -v{8+g}")
                a(f"v_fma_f32 v{T+1}, v{T+1}, v{10+g}, -v{8+g}")
                a(f"v_cvt_pk_bf16_f32 v{r}, v{T}, v{T+1}")
            a(f"ds_write_b128 v{6+g}, {vr(X+g*32+c*4,4)} offset:{(c&1)*8192}")
    norm(0)
    issued = NS
    for s in range(8):
        allowed = 6 * (issued - 1 - s) + (1 if s < NS else 0)
        a(f"s_waitcnt vmcnt({allowed}) lgkmcnt(0)")
        a("s_barrier")
        if s >= 1 and issued < 8:
            wdma(issued); issued += 1
        if s < 7:
            norm(s + 1)
    a("K1_end:")
    a("s_endpgm")
    return kernel_desc("k1_qkv_kernel", 104), f"; @launch kernel=k1_qkv_kernel grid=(256,1,1) block=(512,1,1) lds={XB+16384}"

def k2(a):
    TS = 2064
    kernel_begin(a, "k2_attn_kernel")
    a("s_cmp_ge_u32 s2, 256")
    a("s_cbranch_scc1 K2_end")
    a(f"s_load_dwordx2 s[8:9], s[0:1], {KA['ws']}")
    a(f"s_load_dwordx2 s[4:5], s[0:1], {KA['w1']}")
    a(f"s_load_dwordx2 s[6:7], s[0:1], {KA['w2']}")
    a(f"s_load_dwordx2 s[40:41], s[0:1], {KA['wo']}")
    wave_id(a, 3, 1)
    a.c("head=s10, qtile=s11")
    a("""s_and_b32 s12, s2, 7
    s_lshr_b32 s13, s2, 3
    s_lshl_b32 s10, s12, 2
    s_and_b32 s14, s13, 3
    s_add_u32 s10, s10, s14
    s_lshr_b32 s11, s13, 2
    s_lshl_b32 s11, s11, 3
    s_add_u32 s11, s11, s3
    v_lshlrev_b32 v1, 4, v0
    s_lshl_b32 s12, s10, 16
    s_lshl_b32 s13, s11, 10
    s_add_u32 s12, s12, s13
    s_lshl_b32 s13, s10, 17
    s_lshl_b32 s14, s3, 10
    s_add_u32 s13, s13, s14""")
    a(f"s_add_u32 s13, s13, {hex(WS_KV)}")
    a(f"""s_lshr_b32 s14, s3, 1
    s_mul_i32 s14, s14, {TS}
    s_and_b32 s15, s3, 1
    s_lshl_b32 s15, s15, 10
    s_add_u32 s14, s14, s15
    s_waitcnt lgkmcnt(0)""")
    srd(a, 24, 8, 0x1000000)
    mark(a)
    if PF:
        srd(a, 44, 4, 2048*3584); srd(a, 48, 6, 1792*4096); srd(a, 52, 40, 512*1024)
        a("""s_lshr_b32 s17, s2, 3
        s_lshl_b32 s17, s17, 3
        s_add_u32 s17, s17, s3
        s_and_b32 s18, s2, 7
        s_lshr_b32 s18, s18, 1
        s_mul_i32 s19, s17, 28672
        s_mul_i32 s20, s18, 896
        s_add_u32 s19, s19, s20
        s_mul_i32 s20, s17, 28672
        s_lshl_b32 s21, s18, 10
        s_add_u32 s20, s20, s21
        s_lshl_b32 s21, s17, 11
        v_lshlrev_b32 v6, 4, v0
        v_min_u32 v104, 880, v6""")
    Q = 8
    a(f"buffer_load_dwordx4 {vr(Q,4)}, v1, s[24:27], s12 offen")
    for n in range(16):
        a(f"s_add_u32 m0, s14, {n*4*TS}")
        a(f"s_nop 0")
        a(f"buffer_load_dwordx4 v1, s[24:27], s13 offen lds")
        a(f"s_add_u32 s13, s13, 8192")
    a.c("ones chunks (every wave writes the same values)")
    a(f"""v_mov_b32 v12, 0x3f803f80
    v_mov_b32 v13, 0x3f803f80
    v_mov_b32 v14, 0x3f803f80
    v_mov_b32 v15, 0x3f803f80
    v_mul_u32_u24 v2, {TS}, v0
    ds_write_b128 v2, v[12:15] offset:2048""")
    a.c("addresses: v1 K ; v2 V m0 ; v3 V m1")
    a("""v_and_b32 v4, 15, v0
    v_lshrrev_b32 v5, 5, v0
    v_lshlrev_b32 v5, 8, v5
    v_lshl_add_u32 v4, v4, 4, v5
    v_add_u32 v2, 1024, v4
    v_add_u32 v3, 1536, v4
    v_and_b32 v4, 16, v0
    v_cmp_eq_u32 vcc, 0, v4
    v_mov_b32 v5, 2048
    s_nop 0
    v_cndmask_b32 v2, v5, v2, vcc
    v_cndmask_b32 v3, v5, v3, vcc
    v_mov_b32 v7, 0xdddddddd""")
    S0, S1, O, C = 16, 32, 48, 64
    KB = [80, 84]
    VB = [88, 96]
    for i in range(16):
        a(f"v_mov_b32 v{O+i}, 0")
        a(f"v_mov_b32 v{C+i}, 0")
        a(f"v_mov_b32 v{S1+i}, 0")
    for i in range(8):
        a(f"v_mov_b32 v{VB[1]+i}, 0")
    mark(a)
    a("s_waitcnt vmcnt(13) lgkmcnt(0)")
    a("s_barrier")
    mark(a)
    if STAMP: a("s_waitcnt lgkmcnt(0)")
    a(f"ds_read_b128 {vr(KB[0],4)}, v1")
    a(f"ds_read_b128 {vr(KB[1],4)}, v1 offset:{TS}")
    a(f"ds_read_b128 {vr(VB[0],4)}, v2")
    a("s_waitcnt lgkmcnt(2)")
    a(f"v_mfma_f32_32x32x16_bf16 {vr(S0,16)}, {vr(KB[0],4)}, {vr(Q,4)}, {vr(C,16)}")
    a("s_mov_b32 s16, 0")
    a("s_nop 11")
    a("K2_loop:")
    for t in range(8):
        S, Sn = (S0, S1) if t % 2 == 0 else (S1, S0)
        cur, oth = t & 1, (t & 1) ^ 1
        ex = [f"v_exp_f32 v{S+i}, v{S+i}" for i in range(16)]
        a(ex[0]); a(ex[1])
        a(f"v_smfmac_f32_32x32x32_bf16 {vr(O,16)}, {vr(VB[oth]+4,4)}, {vr(Sn+8,8)}, v7")
        a(f"ds_read_b128 {vr(VB[cur]+4,4)}, v3 offset:{t*TS}")
        for e in ex[2:6]: a(e)
        a("s_waitcnt lgkmcnt(2)")
        a(f"v_mfma_f32_32x32x16_bf16 {vr(Sn,16)}, {vr(KB[oth],4)}, {vr(Q,4)}, {vr(C,16)}")
        a(f"ds_read_b128 {vr(KB[cur],4)}, v1 offset:{(t+2)*TS}")
        for e in ex[6:11]: a(e)
        a("s_waitcnt lgkmcnt(2)")
        a(f"v_smfmac_f32_32x32x32_bf16 {vr(O,16)}, {vr(VB[cur],4)}, {vr(S,8)}, v7")
        a(f"ds_read_b128 {vr(VB[oth],4)}, v2 offset:{(t+1)*TS}")
        for e in ex[11:16]: a(e)
        a("s_waitcnt lgkmcnt(2)")
    if PF:
        a("""buffer_load_dwordx4 v[108:111], v104, s[44:47], s19 offen
        s_add_u32 s19, s19, 3584
        buffer_load_dwordx4 v[108:111], v6, s[48:51], s20 offen
        s_add_u32 s20, s20, 4096
        buffer_load_dword v108, v6, s[52:55], s21 offen
        s_xor_b32 s21, s21, 1024""")
    a(f"v_add_u32 v1, {8*TS}, v1")
    a(f"v_add_u32 v2, {8*TS}, v2")
    a(f"v_add_u32 v3, {8*TS}, v3")
    a("""s_cmp_lg_u32 s16, 0
    s_cbranch_scc1 K2_nobar""")
    mark(a)
    a(f"""s_waitcnt vmcnt({3 if PF else 0})
    s_barrier""")
    mark(a)
    if STAMP: a("s_waitcnt lgkmcnt(0)")
    a("""K2_nobar:
    s_add_u32 s16, s16, 1
    s_cmp_lt_u32 s16, 8
    s_cbranch_scc1 K2_loop""")
    mark(a)
    a(f"v_smfmac_f32_32x32x32_bf16 {vr(O,16)}, {vr(VB[1]+4,4)}, {vr(S1+8,8)}, v7")
    a(f"""s_lshl_b32 s12, s11, 15
    s_lshl_b32 s13, s10, 10
    s_add_u32 s12, s12, s13
    s_add_u32 s12, s12, {hex(WS_O)}
    v_lshlrev_b32 v1, 4, v0
    s_nop 10
    v_rcp_f32 v4, v{O+8}
    s_nop 0""")
    for i in range(8):
        a(f"v_mul_f32 v{O+i}, v{O+i}, v4")
    for i in range(4):
        a(f"v_cvt_pk_bf16_f32 v{8+i}, v{O+2*i}, v{O+2*i+1}")
    a("buffer_store_dwordx4 v[8:11], v1, s[24:27], s12 offen")
    stamp_end(a, 1)
    a("K2_end:")
    a("s_endpgm")
    return kernel_desc("k2_attn_kernel", 112), f"; @launch kernel=k2_attn_kernel grid=(256,1,1) block=(512,1,1) lds={66*TS}"

ACC = 16
def gemm_setup(a, RS, perm):
    a(f"""s_and_b32 s13, s3, 1
    s_lshl_b32 s14, s13, 11
    v_lshlrev_b32 v1, 4, v0
    v_add_u32 v1, s14, v1
    v_lshrrev_b32 v6, 3, v0
    v_and_b32 v7, 7, v0
    v_bfe_u32 v8, v6, 1, 1
    v_lshlrev_b32 v8, 2, v8
    v_xor_b32 v7, v7, v8
    v_lshlrev_b32 v7, 4, v7
    v_mul_u32_u24 v2, {RS}, v6
    v_add_u32 v2, v2, v7
    s_mul_i32 s14, s3, {16*RS}
    s_add_u32 s14, s14, s12
    v_add_u32 v2, s14, v2
    v_add_u32 v3, {8*RS-1024}, v2
    s_lshl_b32 s14, s13, 13
    v_lshlrev_b32 v4, 4, v0
    v_add_u32 v4, s14, v4""")
    a.c("W read addr: row=4h+r', chunk")
    a("""v_bfe_u32 v6, v0, 2, 2
    v_lshrrev_b32 v7, 5, v0
    v_lshl_add_u32 v7, v7, 2, v6
    v_lshlrev_b32 v7, 7, v7""")
    if not perm:
        a("""v_bfe_u32 v8, v0, 4, 1
        v_lshlrev_b32 v8, 2, v8
        v_and_b32 v9, 3, v0
        v_add_u32 v8, v8, v9""")
    else:
        a("""v_and_b32 v8, 1, v0
        v_lshlrev_b32 v8, 2, v8
        v_bfe_u32 v9, v0, 4, 1
        v_lshl_add_u32 v8, v9, 1, v8
        v_bfe_u32 v9, v0, 1, 1
        v_add_u32 v8, v8, v9""")
    a("""s_lshr_b32 s14, s3, 1
    s_lshl_b32 s14, s14, 3
    v_add_u32 v8, s14, v8
    v_lshrrev_b32 v9, 1, v6
    v_lshlrev_b32 v9, 3, v9
    v_xor_b32 v8, v8, v9
    v_lshl_add_u32 v5, v8, 3, v7
    v_add_u32 v5, 2048, v5
    s_lshl_b32 s28, s3, 12
    s_mov_b32 s29, 0
    s_mov_b32 s30, 0""")

def gemm_dma(a, RS, slot_imm):
    a(f"s_add_u32 m0, s28, {slot_imm*16384}")
    a("s_nop 0")
    a("buffer_load_dwordx4 v1, s[16:19], s29 offen lds")
    a("buffer_load_dwordx4 v1, s[16:19], s29 offen offset:1024 lds")
    a(f"s_add_u32 m0, s28, {slot_imm*16384+2048}")
    a("s_add_u32 s29, s29, 4096")
    a("buffer_load_dwordx4 v2, s[20:23], s30 offen lds")
    a("buffer_load_dwordx4 v3, s[20:23], s30 offen offset:1024 lds")
    a(f"s_add_u32 s30, s30, {64*RS}")

def gemm_main(a, tag, RS, nstage, w_is_A):
    FR = 32
    mark(a)
    for s in range(7):
        gemm_dma(a, RS, s)
    mark(a)
    for i in range(16):
        a(f"v_mov_b32 v{ACC+i}, 0")
    for i in range(32):
        a(f"v_mov_b32 v{FR+32+i}, 0")
    a.c("dma slot for stage s+7 is (s+7)&7 = (s-1)&7")
    a("s_mov_b32 s31, 0")
    if STAMP:
        a("s_waitcnt vmcnt(24)")
        mark(a)
    a(f"{tag}_loop:")
    for u in range(4):
        b = FR + 32 * (u & 1); pb = FR + 32 * ((u & 1) ^ 1)
        a("s_waitcnt vmcnt(24) lgkmcnt(0)")
        a("s_barrier")
        for j in range(4):
            a(f"ds_read_b128 {vr(b+4*j,4)}, v4 offset:{u*16384 + (j>>1)*4096 + (j&1)*1024}")
            for q in range(2):
                a(f"ds_read_b64_tr_b16 {vr(b+16+4*j+2*q,2)}, v5 offset:{u*16384 + j*4096 + q*1024}")
            A, B = (pb+16+4*j, pb+4*j) if w_is_A else (pb+4*j, pb+16+4*j)
            a(f"v_mfma_f32_32x32x16_bf16 {vr(ACC,16)}, {vr(A,4)}, {vr(B,4)}, {vr(ACC,16)}")
        if u == 0:
            a("s_xor_b32 s28, s28, 0x10000")
            gemm_dma(a, RS, 3)
            a("s_xor_b32 s28, s28, 0x10000")
        else:
            gemm_dma(a, RS, u - 1)
    a("""s_xor_b32 s28, s28, 0x10000
    v_xor_b32 v4, 0x10000, v4
    v_xor_b32 v5, 0x10000, v5
    s_add_u32 s31, s31, 4""")
    a(f"s_cmp_lt_u32 s31, {nstage}")
    a(f"s_cbranch_scc1 {tag}_loop")
    mark(a)
    a("s_waitcnt lgkmcnt(0)")
    pb = FR + 32
    for j in range(4):
        A, B = (pb+16+4*j, pb+4*j) if w_is_A else (pb+4*j, pb+16+4*j)
        a(f"v_mfma_f32_32x32x16_bf16 {vr(ACC,16)}, {vr(A,4)}, {vr(B,4)}, {vr(ACC,16)}")

def unpack(a, dst, src):
    a(f"v_lshlrev_b32 v{dst}, 16, v{src}")
    a(f"v_and_b32 v{dst+1}, 0xffff0000, v{src}")

def k3(a):
    kernel_begin(a, "k3_proj_kernel")
    a("s_cmp_ge_u32 s2, 256")
    a("s_cbranch_scc1 K3_end")
    a(f"s_load_dwordx2 s[4:5], s[0:1], {KA['x']}")
    a(f"s_load_dwordx2 s[6:7], s[0:1], {KA['wo']}")
    a(f"s_load_dwordx2 s[8:9], s[0:1], {KA['ws']}")
    wave_id(a, 3, 1)
    a.c("tb=s10 (0..31) db=s11 (0..7)")
    a(f"""s_and_b32 s12, s2, 7
    s_lshr_b32 s13, s2, 3
    s_and_b32 s11, s13, 7
    s_lshr_b32 s13, s13, 3
    s_lshl_b32 s10, s12, 2
    s_add_u32 s10, s10, s13
    s_lshl_b32 s12, s10, 1
    s_lshr_b32 s13, s3, 1
    s_add_u32 s12, s12, s13
    s_lshl_b32 s12, s12, 15
    s_add_u32 s12, s12, {hex(WS_O)}
    s_waitcnt lgkmcnt(0)""")
    srd(a, 16, 8, 32768, "s12")
    srd(a, 20, 6, 512 * 1024)
    srd(a, 24, 8, 0x1000000)
    srd(a, 32, 4, 2048 * 1024)
    a.c("tile=s36=(tb*2+wa) ; dt=s37=(db*2+wb)")
    a("""s_and_b32 s13, s3, 1
    s_lshl_b32 s36, s10, 1
    s_add_u32 s36, s36, s13
    s_lshr_b32 s13, s3, 1
    s_lshl_b32 s37, s11, 1
    s_add_u32 s37, s37, s13
    v_and_b32 v10, 31, v0
    v_lshrrev_b32 v11, 5, v0
    v_lshlrev_b32 v12, 10, v10
    v_lshl_add_u32 v12, v11, 5, v12
    s_lshl_b32 s13, s36, 15
    s_lshl_b32 s14, s37, 6
    s_add_u32 s13, s13, s14""")
    XR = 96
    a(f"buffer_load_dwordx4 {vr(XR,4)}, v12, s[32:35], s13 offen")
    a(f"buffer_load_dwordx4 {vr(XR+4,4)}, v12, s[32:35], s13 offen offset:16")
    a("s_lshl_b32 s12, s11, 7")
    gemm_setup(a, 1024, True)
    gemm_main(a, "K3", 1024, 8, True)
    T = 32
    for i in range(8):
        unpack(a, T + 2*i, XR + i)
    a("s_nop 3")
    for i in range(16):
        a(f"v_add_f32 v{ACC+i}, v{ACC+i}, v{T+i}")
    a(f"v_add_f32 v6, v{ACC}, v{ACC+1}")
    a(f"v_mul_f32 v7, v{ACC}, v{ACC}")
    a(f"v_fmac_f32 v7, v{ACC+1}, v{ACC+1}")
    for i in range(2, 16):
        a(f"v_add_f32 v6, v6, v{ACC+i}")
        a(f"v_fmac_f32 v7, v{ACC+i}, v{ACC+i}")
    a("""v_mov_b32 v8, v6
    v_mov_b32 v9, v7
    s_nop 1
    v_permlane32_swap_b32 v6, v8
    v_permlane32_swap_b32 v7, v9
    s_nop 1
    v_add_f32 v6, v6, v8
    v_add_f32 v7, v7, v9
    v_and_b32 v7, 0x7fffffff, v7
    v_lshlrev_b32 v12, 3, v10
    s_lshl_b32 s13, s36, 12""")
    a(f"s_add_u32 s13, s13, {hex(WS_ST)}")
    a("""s_lshl_b32 s14, s37, 8
    s_add_u32 s14, s14, s13
    s_mov_b32 exec_hi, 0
    buffer_store_dwordx2 v[6:7], v12, s[24:27], s14 offen sc1
    s_mov_b32 exec_hi, -1""")
    a.c("store h residual")
    for i in range(8):
        a(f"v_cvt_pk_bf16_f32 v{T+i}, v{ACC+2*i}, v{ACC+2*i+1}")
    a(f"""s_lshl_b32 s14, s36, 15
    s_lshl_b32 s15, s37, 11
    s_add_u32 s14, s14, s15
    s_add_u32 s14, s14, {hex(WS_HR)}
    v_lshlrev_b32 v13, 4, v0""")
    a(f"buffer_store_dwordx4 {vr(T,4)}, v13, s[24:27], s14 offen")
    a(f"buffer_store_dwordx4 {vr(T+4,4)}, v13, s[24:27], s14 offen offset:1024")
    a("v_lshl_add_u32 v12, v11, 11, v12")
    P = 48
    mark(a)
    a("s_mov_b32 s38, 200000")
    a("K3_poll:")
    for i in range(8):
        a(f"buffer_load_dwordx2 {vr(P+2*i,2)}, v12, s[24:27], s13 offen offset:{i*256} sc1")
    a("s_waitcnt vmcnt(0)")
    a(f"v_or3_b32 v6, v{P+1}, v{P+3}, v{P+5}")
    a(f"v_or3_b32 v6, v6, v{P+7}, v{P+9}")
    a(f"v_or3_b32 v6, v6, v{P+11}, v{P+13}")
    a(f"v_or_b32 v6, v6, v{P+15}")
    a("v_cmp_gt_i32 vcc, 0, v6")
    a("s_sub_u32 s38, s38, 1")
    a("s_cbranch_scc1 K3_pdone")
    a("s_cbranch_vccnz K3_poll")
    a("K3_pdone:")
    mark(a)
    a(f"v_add_f32 v6, v{P}, v{P+2}")
    a(f"v_add_f32 v7, v{P+1}, v{P+3}")
    for i in range(2, 8):
        a(f"v_add_f32 v6, v6, v{P+2*i}")
        a(f"v_add_f32 v7, v7, v{P+2*i+1}")
    a(f"""v_mov_b32 v8, v6
    v_mov_b32 v9, v7
    s_nop 1
    v_permlane32_swap_b32 v6, v8
    v_permlane32_swap_b32 v7, v9
    s_mov_b32 s14, {f32(1/512)}
    s_mov_b32 s15, {f32(1+EPS)}
    v_add_f32 v6, v6, v8
    v_add_f32 v7, v7, v9
    v_mul_f32 v6, s14, v6
    v_mul_f32 v7, s14, v7
    v_fma_f32 v7, -v6, v6, v7
    v_max_f32 v7, 0, v7
    v_mov_b32 v8, {f32(EPS*EPS)}
    v_fma_f32 v7, v7, s15, v8
    v_rsq_f32 v7, v7
    s_nop 0
    v_mul_f32 v6, v6, v7""")
    for i in range(16):
        a(f"v_fma_f32 v{ACC+i}, v{ACC+i}, v7, -v6")
    for i in range(8):
        a(f"v_cvt_pk_bf16_f32 v{P+i}, v{ACC+2*i}, v{ACC+2*i+1}")
    a.c("transpose through wave-private LDS [32 tokens][64B]")
    a("""s_lshl_b32 s14, s3, 11
    s_add_u32 s14, s14, 0x20000
    v_lshlrev_b32 v6, 6, v10
    v_lshl_add_u32 v6, v11, 5, v6
    v_add_u32 v6, s14, v6""")
    a(f"ds_write_b128 v6, {vr(P,4)}")
    a(f"ds_write_b128 v6, {vr(P+4,4)} offset:16")
    a("""v_bfe_u32 v7, v0, 2, 2
    v_lshl_add_u32 v7, v11, 2, v7
    v_lshlrev_b32 v7, 6, v7
    v_and_b32 v8, 1, v0
    v_lshlrev_b32 v8, 2, v8
    v_bfe_u32 v9, v0, 4, 1
    v_lshl_add_u32 v8, v9, 1, v8
    v_bfe_u32 v9, v0, 1, 1
    v_add_u32 v8, v8, v9
    v_lshl_add_u32 v7, v8, 3, v7
    v_add_u32 v7, s14, v7
    s_waitcnt lgkmcnt(0)""")
    for m in range(2):
        for q in range(2):
            a(f"ds_read_b64_tr_b16 {vr(P+8+4*m+2*q,2)}, v7 offset:{m*1024+q*512}")
    a(f"""s_lshl_b32 s14, s37, 17
    s_lshl_b32 s15, s36, 11
    s_add_u32 s14, s14, s15
    s_add_u32 s14, s14, {hex(WS_HN)}
    s_waitcnt lgkmcnt(0)""")
    a(f"buffer_store_dwordx4 {vr(P+8,4)}, v13, s[24:27], s14 offen")
    a(f"buffer_store_dwordx4 {vr(P+12,4)}, v13, s[24:27], s14 offen offset:1024")
    stamp_end(a, 2)
    a("K3_end:")
    a("s_endpgm")
    return kernel_desc("k3_proj_kernel", 104), f"; @launch kernel=k3_proj_kernel grid=(256,1,1) block=(256,1,1) lds={0x20000+8192}"

def k4(a):
    kernel_begin(a, "k4_mlp1_kernel")
    a("s_cmp_ge_u32 s2, 224")
    a("s_cbranch_scc1 K4_end")
    a(f"s_load_dwordx4 s[4:7], s[0:1], {KA['w1']}")
    a(f"s_load_dwordx2 s[8:9], s[0:1], {KA['ws']}")
    wave_id(a, 3, 1)
    a.c("ft=s10 (0..27) db=s11 (0..7)")
    a(f"""s_and_b32 s12, s2, 7
    s_lshr_b32 s13, s2, 3
    s_and_b32 s11, s13, 3
    s_lshr_b32 s13, s13, 2
    s_and_b32 s14, s12, 1
    s_lshl_b32 s14, s14, 2
    s_add_u32 s11, s11, s14
    s_lshr_b32 s14, s12, 1
    s_mul_i32 s10, s14, 7
    s_add_u32 s10, s10, s13
    s_lshl_b32 s12, s11, 1
    s_lshr_b32 s13, s3, 1
    s_add_u32 s12, s12, s13
    s_lshl_b32 s12, s12, 17
    s_add_u32 s12, s12, {hex(WS_HN)}
    s_waitcnt lgkmcnt(0)""")
    srd(a, 16, 8, 131072, "s12")
    srd(a, 20, 4, 2048 * 3584)
    srd(a, 24, 8, 0x1000000)
    srd(a, 32, 6, 1792 * 2)
    a("""s_lshl_b32 s12, s10, 7
    s_lshr_b32 s13, s3, 1
    s_lshl_b32 s13, s13, 6
    s_add_u32 s13, s13, s12
    v_lshrrev_b32 v11, 5, v0
    v_lshlrev_b32 v12, 3, v11""")
    XR = 96
    for g in range(4):
        a(f"buffer_load_dwordx2 {vr(XR+2*g,2)}, v12, s[32:35], s13 offen offset:{16*g}")
    gemm_setup(a, 3584, False)
    gemm_main(a, "K4", 3584, 32, True)
    T = 32
    for i in range(8):
        unpack(a, T + 2*i, XR + i)
    c0 = -2 * LOG2E * math.sqrt(2 / math.pi)
    a(f"s_mov_b32 s14, {f32(c0*0.044715)}")
    a(f"v_mov_b32 v6, {f32(c0)}")
    a("s_nop 1")
    for i in range(16):
        a(f"v_add_f32 v{ACC+i}, v{ACC+i}, v{T+i}")
    for i in range(16):
        a(f"v_mul_f32 v{T+i}, v{ACC+i}, v{ACC+i}")
    for i in range(16):
        a(f"v_fma_f32 v{T+i}, v{T+i}, s14, v6")
    for i in range(16):
        a(f"v_mul_f32 v{T+i}, v{T+i}, v{ACC+i}")
    for i in range(16):
        a(f"v_exp_f32 v{T+i}, v{T+i}")
    for i in range(16):
        a(f"v_add_f32 v{T+i}, 1.0, v{T+i}")
    for i in range(16):
        a(f"v_rcp_f32 v{T+i}, v{T+i}")
    for i in range(16):
        a(f"v_mul_f32 v{ACC+i}, v{ACC+i}, v{T+i}")
    for i in range(8):
        a(f"v_cvt_pk_bf16_f32 v{T+i}, v{ACC+2*i}, v{ACC+2*i+1}")
    a(f"""s_and_b32 s13, s3, 1
    s_lshl_b32 s14, s11, 1
    s_add_u32 s14, s14, s13
    s_mul_i32 s14, s14, {112*1024}
    s_lshl_b32 s15, s10, 12
    s_add_u32 s14, s14, s15
    s_lshr_b32 s13, s3, 1
    s_lshl_b32 s13, s13, 11
    s_add_u32 s14, s14, s13
    s_add_u32 s14, s14, {hex(WS_U)}
    v_lshlrev_b32 v13, 4, v0""")
    a(f"buffer_store_dwordx4 {vr(T,4)}, v13, s[24:27], s14 offen")
    a(f"buffer_store_dwordx4 {vr(T+4,4)}, v13, s[24:27], s14 offen offset:1024")
    stamp_end(a, 3)
    a("K4_end:")
    a("s_endpgm")
    return kernel_desc("k4_mlp1_kernel", 104), f"; @launch kernel=k4_mlp1_kernel grid=(224,1,1) block=(256,1,1) lds={0x20000}"

def k5(a):
    kernel_begin(a, "k5_mlp2_kernel")
    a("s_cmp_ge_u32 s2, 256")
    a("s_cbranch_scc1 K5_end")
    a(f"s_load_dwordx4 s[4:7], s[0:1], {KA['w2']}")
    a(f"s_load_dwordx2 s[8:9], s[0:1], {KA['ws']}")
    a(f"s_load_dwordx2 s[40:41], s[0:1], {KA['out']}")
    wave_id(a, 3, 1)
    a.c("st=s10 (0..31) db=s11 (0..7)")
    a(f"""s_and_b32 s12, s2, 7
    s_lshr_b32 s13, s2, 3
    s_and_b32 s11, s13, 3
    s_lshr_b32 s13, s13, 2
    s_and_b32 s14, s12, 1
    s_lshl_b32 s14, s14, 2
    s_add_u32 s11, s11, s14
    s_lshr_b32 s14, s12, 1
    s_lshl_b32 s10, s14, 3
    s_add_u32 s10, s10, s13
    s_lshl_b32 s12, s11, 1
    s_lshr_b32 s13, s3, 1
    s_add_u32 s12, s12, s13
    s_mul_i32 s12, s12, {112*1024}
    s_add_u32 s12, s12, {hex(WS_U)}
    s_waitcnt lgkmcnt(0)""")
    srd(a, 16, 8, 112 * 1024, "s12")
    srd(a, 20, 4, 1792 * 4096)
    srd(a, 24, 8, 0x1000000)
    srd(a, 32, 6, 2048 * 2)
    srd(a, 44, 40, 2048 * 1024)
    a.c("stile=s36=st*2+wb ; dt=s37=db*2+wa")
    a(f"""s_lshr_b32 s13, s3, 1
    s_lshl_b32 s36, s10, 1
    s_add_u32 s36, s36, s13
    s_and_b32 s13, s3, 1
    s_lshl_b32 s37, s11, 1
    s_add_u32 s37, s37, s13
    v_and_b32 v10, 31, v0
    v_lshrrev_b32 v11, 5, v0
    v_lshlrev_b32 v12, 1, v10
    s_lshl_b32 s13, s36, 6
    s_lshl_b32 s14, s36, 15
    s_lshl_b32 s15, s37, 11
    s_add_u32 s14, s14, s15
    s_add_u32 s14, s14, {hex(WS_HR)}
    v_lshlrev_b32 v13, 4, v0""")
    XR = 96
    a(f"buffer_load_ushort v14, v12, s[32:35], s13 offen")
    a(f"buffer_load_dwordx4 {vr(XR,4)}, v13, s[24:27], s14 offen")
    a(f"buffer_load_dwordx4 {vr(XR+4,4)}, v13, s[24:27], s14 offen offset:1024")
    a("s_lshl_b32 s12, s10, 7")
    gemm_setup(a, 4096, False)
    gemm_main(a, "K5", 4096, 28, False)
    T = 32
    for i in range(8):
        unpack(a, T + 2*i, XR + i)
    a("v_lshlrev_b32 v14, 16, v14")
    for i in range(16):
        a(f"v_add_f32 v{T+i}, v{T+i}, v14")
    for i in range(16):
        a(f"v_add_f32 v{ACC+i}, v{ACC+i}, v{T+i}")
    for i in range(8):
        a(f"v_cvt_pk_bf16_f32 v{T+i}, v{ACC+2*i}, v{ACC+2*i+1}")
    a("""v_lshlrev_b32 v12, 10, v10
    v_lshl_add_u32 v12, v11, 5, v12
    s_lshl_b32 s13, s36, 15
    s_lshl_b32 s14, s37, 6
    s_add_u32 s13, s13, s14""")
    a(f"buffer_store_dwordx4 {vr(T,4)}, v12, s[44:47], s13 offen")
    a(f"buffer_store_dwordx4 {vr(T+4,4)}, v12, s[44:47], s13 offen offset:16")
    stamp_end(a, 4)
    a("K5_end:")
    a("s_endpgm")
    return kernel_desc("k5_mlp2_kernel", 104), f"; @launch kernel=k5_mlp2_kernel grid=(256,1,1) block=(256,1,1) lds={0x20000}"

def knop(a):
    kernel_begin(a, "k0_nop_kernel")
    a("s_endpgm")
    return kernel_desc("k0_nop_kernel", 8), "; @launch kernel=k0_nop_kernel grid=(256,1,1) block=(256,1,1) lds=0"

def build(extra_nops=0):
    a = Asm()
    res = [f(a) for f in (k1, k2, k3, k4, k5)]
    launches = [r[1] for r in res]
    if extra_nops:
        r = knop(a); res.append(r)
        launches += [r[1]] * extra_nops
    hdr = "\n".join(launches) + '\n.amdgcn_target "amdgcn-amd-amdhsa--gfx950"\n.text\n'
    return hdr + a.text() + '.section .rodata,"a"\n' + "".join(r[0] for r in res)

if __name__ == "__main__":
    out = sys.argv[1] if len(sys.argv) > 1 else f"cdna_kernels/{NAME}.s"
    n = int(sys.argv[2]) if len(sys.argv) > 2 else 0
    open(out, "w").write(build(n))
```

```python
import sys, math, os
from asmlib import *
NAME = "sequential_preLN__softmax_full_mha__mixer_token_mlp__prompt"
def opt(n, d):
    return int(os.environ.get(n, d))
STAMP = opt("STAMP", 0)
MAPX = opt("MAPX", 0)
NT1 = " nt" if opt("NT1", 0) else ""
NTW = " nt" if opt("NTW", 0) else ""
NTT = " nt" if opt("NTT", 0) else ""
UPF = opt("UPF", 3)

WS_Q, WS_KV, WS_O, WS_HR = 0x0, 0x200000, 0x600000, 0x800000
WS_HN, WS_U, WS_ST = 0xA00000, 0xC00000, 0xDC0000
WS_F1, WS_F2 = 0xE00000, 0xE08000
WS_STAMP = 0xF00000
EPS = 1e-5
LOG2E = 1.4426950408889634
sX, sWQ, sWS, sW1, sWO, sW2, sM = 28, 32, 36, 40, 44, 48, 52
XCD, J = 26, 27
TB1, HG, ROT1, HEAD, QB, TB3, DB3, FT, DB5, ST = range(56, 66)
BUD = 10
T0 = 66
MK = 80

class Prog(Asm):
    def __init__(self):
        super().__init__()
        self.vmq = []; self.lgq = []; self.nmark = 0; self.ool = []
    def vm(self, tag, ins):
        self(ins); self.vmq.append(tag)
    def lg(self, tag, ins):
        self(ins); self.lgq.append(tag)
    def _n(self, q, tag):
        tags = tag if isinstance(tag, (list, set)) else [tag]
        idx = [i for i, t in enumerate(q) if t in tags]
        if not idx:
            return None
        return len(q) - 1 - idx[-1]
    def wait(self, vm=None, lg=None):
        parts = []
        if vm is not None:
            n = 0 if vm == "all" else self._n(self.vmq, vm)
            if n is not None:
                n = min(n, 63)
                self.vmq = self.vmq[len(self.vmq) - n:] if n else []
                parts.append(f"vmcnt({n})")
        if lg is not None:
            n = 0 if lg == "all" else self._n(self.lgq, lg)
            if n is not None:
                n = min(n, 15)
                self.lgq = self.lgq[len(self.lgq) - n:] if n else []
                parts.append(f"lgkmcnt({n})")
        if parts:
            self("s_waitcnt " + " ".join(parts))
    def mark(self, i):
        if STAMP:
            self("s_memrealtime s[78:79]")
            self("s_waitcnt lgkmcnt(0)")
            self(f"s_mov_b32 s{MK+i}, s78")
            self.lgq = []

def S(r, n=4):
    return sr(r, n)

def spin_tail(a, lbl):
    a(f"s_cbranch_vccz {lbl}_ok")
    a(f"s_sub_u32 s{BUD}, s{BUD}, 1")
    a(f"s_cbranch_scc0 {lbl}")
    a(f"s_mov_b32 s{BUD}, 0")
    a(f"{lbl}_ok:")

def unpack(a, dst, src):
    a(f"v_lshlrev_b32 v{dst}, 16, v{src}")
    a(f"v_and_b32 v{dst+1}, 0xffff0000, v{src}")

def prologue(a):
    a("s_cmp_ge_u32 s2, 256")
    a("s_cbranch_scc1 L_end")
    a("s_load_dwordx16 s[4:19], s[0:1], 0")
    a("s_load_dwordx4 s[20:23], s[0:1], 64")
    a("s_load_dwordx2 s[24:25], s[0:1], 80")
    if STAMP:
        a(f"s_memrealtime s[78:79]")
        a(f"s_memtime s[76:77]")
    a(f"""v_lshrrev_b32 v1, 6, v0
    s_and_b32 s{XCD}, s2, 7
    v_readfirstlane_b32 s3, v1
    v_and_b32 v0, 63, v0
    s_lshr_b32 s{J}, s2, 3
    s_lshr_b32 s66, s{XCD}, 1
    s_and_b32 s67, s{XCD}, 1
    s_and_b32 s68, s{J}, 7
    s_lshr_b32 s69, s{J}, 3
    s_lshl3_add_u32 s{TB1}, s66, s68
    s_lshl2_add_u32 s{HG}, s67, s69
    s_lshl1_add_u32 s{ROT1}, s{HG}, s{TB1}
    s_and_b32 s{ROT1}, s{ROT1}, 7
    s_lshl2_add_u32 s{TB3}, s{XCD}, s69
    s_mov_b32 s{DB3}, s68
    s_and_b32 s68, s{J}, 3
    s_lshr_b32 s69, s{J}, 2
    s_lshl2_add_u32 s{DB5}, s67, s68
    s_lshl3_add_u32 s{ST}, s66, s69
    s_mul_i32 s{FT}, s66, 7
    s_add_u32 s{FT}, s{FT}, s69""")
    if MAPX:
        a(f"s_mov_b32 s{HEAD}, s{J}\ns_mov_b32 s{QB}, s{XCD}")
    else:
        a(f"s_lshl2_add_u32 s{HEAD}, s{XCD}, s68\ns_mov_b32 s{QB}, s69")
    a("s_waitcnt lgkmcnt(0)")
    if STAMP:
        a(f"s_mov_b32 s{MK}, s78\ns_mov_b32 s{MK+20}, s76")
    srd(a, sX, 4, 2048 * 1024)
    srd(a, sWQ, 6, 512 * 3072)
    srd(a, sWS, 24, 0x1000000)
    srd(a, sM, 22, 256)
    a(f"s_mov_b32 s{BUD}, 0x40000")

NS = 5
XB = NS * 24576
def p1_wdma_setup(a, vo, hw):
    a(f"""v_bfe_u32 v{vo+1}, v1, 1, 1
    v_lshlrev_b32 v{vo+1}, 2, v{vo+1}
    v_xor_b32 v{vo+1}, v{vo+1}, v2
    v_lshlrev_b32 v{vo+1}, 4, v{vo+1}
    v_mul_u32_u24 v{vo}, 3072, v1
    v_add_u32 v{vo}, v{vo}, v{vo+1}
    s_mul_i32 s66, s{hw}, 49152
    s_lshl_b32 s67, s{HG}, 7
    s_add_u32 s66, s66, s67
    v_add_u32 v{vo}, s66, v{vo}
    v_add_u32 v{vo+1}, 23552, v{vo}
    s_lshl_b32 s70, s{hw}, 11""")
def p1_wdma(a, vo, s):
    slot = s % NS
    a(f"s_add_u32 s66, s{ROT1}, {s}")
    a("s_and_b32 s66, s66, 7")
    a(f"s_mul_i32 s66, s66, {64*3072}")
    for seg in range(3):
        a(f"s_add_u32 m0, s70, {slot*24576 + seg*8192}")
        a(f"s_add_u32 s67, s66, {seg*1024}")
        a.vm(("W", s), f"buffer_load_dwordx4 v{vo}, {S(sWQ)}, s67 offen{NT1} lds")
        a.vm(("W", s), f"buffer_load_dwordx4 v{vo+1}, {S(sWQ)}, s67 offen offset:1024{NT1} lds")

def p1(a):
    a("s_cmp_ge_u32 s3, 4")
    a("s_cbranch_scc1 P1_helper")
    a.c("WG0 wave3 clears the hand-off flags, then opens the gate in d_debug[0]")
    a(f"""s_lshl_b32 s66, s2, 2
    s_add_u32 s66, s66, s3
    s_cmp_lg_u32 s66, 3
    s_cbranch_scc1 P1_noclr
    v_lshlrev_b32 v1, 7, v0
    v_mov_b32 v2, 0
    s_mov_b32 s66, {hex(WS_F1)}""")
    for i in range(8):
        a(f"buffer_store_dword v2, v1, {S(sWS)}, s66 offen sc1")
        a("s_add_u32 s66, s66, 8192")
    a(f"""v_mov_b32 v1, 1
    s_waitcnt vmcnt(0)
    buffer_store_dword v1, v2, {S(sM)}, 0 offen sc1
    P1_noclr:""")
    a.vmq = ["gate"]
    a("v_lshrrev_b32 v1, 3, v0\nv_and_b32 v2, 7, v0")
    p1_wdma_setup(a, 12, 3)
    a.c("tt=s71 cg=s72")
    a(f"""s_and_b32 s71, s3, 1
    s_lshr_b32 s72, s3, 1
    v_and_b32 v1, 31, v0
    v_lshrrev_b32 v2, 5, v0
    s_lshl_b32 s66, s71, 5
    v_add_u32 v3, s66, v1
    v_bfe_u32 v4, v3, 1, 3
    v_xor_b32 v4, v4, v2
    v_lshlrev_b32 v4, 4, v4
    v_lshl_add_u32 v4, v3, 7, v4
    v_add_u32 v4, {XB}, v4""")
    for j in range(1, 4):
        a(f"v_xor_b32 v{4+j}, {32*j}, v4")
    a(f"""v_bfe_u32 v9, v0, 2, 2
    v_lshl_add_u32 v10, v2, 3, v9
    v_lshlrev_b32 v10, 7, v10
    v_bfe_u32 v11, v0, 4, 1
    v_lshlrev_b32 v11, 2, v11
    v_and_b32 v14, 3, v0
    v_add_u32 v11, v11, v14
    s_lshl_b32 s66, s72, 3
    v_add_u32 v11, s66, v11
    v_lshrrev_b32 v14, 1, v9
    v_lshlrev_b32 v14, 3, v14
    v_xor_b32 v11, v11, v14
    v_lshl_add_u32 v8, v11, 3, v10
    v_add_u32 v9, 49152, v8
    v_add_u32 v10, 98304, v8""")
    a("s_barrier")
    for s in range(UPF):
        p1_wdma(a, 12, s)
    ACC, FR = 16, 64
    def reads(n):
        s, j = n >> 2, n & 3
        b = FR + 16 * (n % 3)
        a.lg(n, f"ds_read_b128 {vr(b,4)}, v{4+j} offset:{(s%3)*8192}")
        slot = s % NS
        for seg in range(3):
            for q in range(2):
                off = (slot & 1) * 24576 + seg * 8192 + j * 2048 + q * 512
                a.lg(n, f"ds_read_b64_tr_b16 {vr(b+4+4*seg+2*q,2)}, v{8+slot//2} offset:{off}")
    def mfmas(n):
        b = FR + 16 * (n % 3)
        c = [vr(ACC + 16*i, 16) if n else "0" for i in range(3)]
        a(f"v_mfma_f32_32x32x16_bf16 {vr(ACC,16)}, {vr(b+4,4)}, {vr(b,4)}, {c[0]}")
        a(f"v_mfma_f32_32x32x16_bf16 {vr(ACC+16,16)}, {vr(b+8,4)}, {vr(b,4)}, {c[1]}")
        a(f"v_mfma_f32_32x32x16_bf16 {vr(ACC+32,16)}, {vr(b,4)}, {vr(b+12,4)}, {c[2]}")
    for n in range(34):
        if n >= 2:
            a.wait(lg=n - 2)
        if n < 32:
            if n % 4 == 0:
                a.wait(vm=("W", n >> 2))
                a("s_barrier")
                if n == 0:
                    a.mark(1)
            reads(n)
        if n >= 2:
            mfmas(n - 2)
    a.mark(2)
    a.c("epilogue: tile = tb*2+tt ; head0 = hg*4+cg*2")
    a(f"""s_lshl1_add_u32 s66, s{TB1}, s71
    s_lshl1_add_u32 s67, s{HG}, s72
    s_lshl_b32 s67, s67, 17
    s_lshl_b32 s66, s66, 10
    s_add_u32 s66, s66, s67
    s_add_u32 s67, s66, 0x10000
    s_lshl_b32 s68, s66, 1
    s_add_u32 s68, s68, {hex(WS_KV)}
    s_add_u32 s69, s68, 0x20000
    v_lshlrev_b32 v4, 4, v0
    v_bfe_u32 v5, v0, 2, 1
    v_bfe_u32 v6, v0, 3, 1
    v_and_b32 v7, 0x33, v0
    v_lshl_add_u32 v7, v5, 3, v7
    v_lshl_add_u32 v7, v6, 2, v7
    v_lshlrev_b32 v5, 4, v7
    v_bfe_u32 v6, v0, 4, 1
    v_lshlrev_b32 v6, 17, v6
    v_and_b32 v7, 15, v0
    v_lshl_add_u32 v6, v7, 4, v6
    v_lshl_add_u32 v6, v2, 8, v6
    s_mov_b32 s74, {f32(0.25*LOG2E)}
    s_mov_b32 s75, {f32(0.25*LOG2E)}""")
    E = 112
    for i in range(8):
        a(f"v_cvt_pk_bf16_f32 v{E+i}, v{ACC+16+2*i}, v{ACC+16+2*i+1}")
    a(f"buffer_store_dwordx4 {vr(E,4)}, v5, {S(sWS)}, s68 offen sc1")
    a(f"buffer_store_dwordx4 {vr(E+4,4)}, v5, {S(sWS)}, s69 offen sc1")
    for i in range(8):
        a(f"v_cvt_pk_bf16_f32 v{E+8+i}, v{ACC+32+2*i}, v{ACC+32+2*i+1}")
    a(f"buffer_store_dwordx4 {vr(E+8,4)}, v6, {S(sWS)}, s68 offen offset:1024 sc1")
    a(f"buffer_store_dwordx4 {vr(E+12,4)}, v6, {S(sWS)}, s68 offen offset:1536 sc1")
    for i in range(8):
        a(f"v_pk_mul_f32 {vr(ACC+2*i,2)}, {vr(ACC+2*i,2)}, s[74:75]")
    for i in range(8):
        a(f"v_cvt_pk_bf16_f32 v{96+i}, v{ACC+2*i}, v{ACC+2*i+1}")
    a(f"buffer_store_dwordx4 {vr(96,4)}, v4, {S(sWS)}, s66 offen sc1")
    a(f"buffer_store_dwordx4 {vr(100,4)}, v4, {S(sWS)}, s67 offen sc1")
    a("s_branch P1_done")
    a("P1_helper:")
    a.vmq = []; a.lgq = []
    X = 16
    a(f"""s_sub_u32 s71, s3, 4
    v_lshrrev_b32 v1, 3, v0
    v_and_b32 v2, 7, v0
    v_lshlrev_b32 v3, 4, v2
    v_lshl_add_u32 v3, v1, 10, v3
    v_add_u32 v14, 8192, v3
    s_lshl_b32 s72, s{TB1}, 16
    s_lshl_b32 s66, s71, 14
    s_add_u32 s72, s72, s66""")
    for c in range(8):
        a(f"s_add_u32 s66, s{ROT1}, {c}")
        a("s_and_b32 s66, s66, 7")
        a("s_lshl_b32 s66, s66, 7")
        a("s_add_u32 s66, s66, s72")
        a.vm(("x", c, 0), f"buffer_load_dwordx4 {vr(X+c*4,4)}, v3, {S(sX)}, s66 offen{NT1}")
        a.vm(("x", c, 1), f"buffer_load_dwordx4 {vr(X+32+c*4,4)}, v14, {S(sX)}, s66 offen{NT1}")
    a("s_barrier")
    p1_wdma_setup(a, 4, 71)
    for g in range(2):
        a(f"""s_lshl_b32 s66, s71, 4
        s_add_u32 s66, s66, {8*g}
        v_add_u32 v12, s66, v1
        v_bfe_u32 v13, v12, 1, 3
        v_xor_b32 v13, v13, v2
        v_lshlrev_b32 v13, 4, v13
        v_lshl_add_u32 v13, v12, 7, v13
        v_add_u32 v{6+g}, {XB}, v13""")
    a("""v_mov_b32 v8, 0
    v_mov_b32 v9, 0
    v_mov_b32 v10, 0
    v_mov_b32 v11, 0
    v_mov_b32 v12, 0x3f803f80""")
    for c in range(8):
        for g in range(2):
            a.wait(vm=("x", c, g))
            for i in range(4):
                r = X + g*32 + c*4 + i
                a(f"v_dot2c_f32_bf16 v{8+g}, v{r}, v12")
                a(f"v_dot2c_f32_bf16 v{10+g}, v{r}, v{r}")
    a("s_nop 2")
    for dpp in ("quad_perm:[1,0,3,2]", "quad_perm:[2,3,0,1]", "row_half_mirror"):
        for i in range(4):
            a(f"v_add_f32_dpp v{8+i}, v{8+i}, v{8+i} {dpp} row_mask:0xf bank_mask:0xf")
    a(f"s_mov_b32 s66, {f32(1/512)}")
    a(f"s_mov_b32 s67, {f32(EPS)}")
    for g in range(2):
        a(f"v_mul_f32 v{8+g}, s66, v{8+g}")
        a(f"v_mul_f32 v{10+g}, s66, v{10+g}")
    for g in range(2):
        a(f"v_fma_f32 v{10+g}, -v{8+g}, v{8+g}, v{10+g}")
        a(f"v_max_f32 v{10+g}, 0, v{10+g}")
        a(f"v_add_f32 v{10+g}, s67, v{10+g}")
        a(f"v_rsq_f32 v{84+2*g}, v{10+g}")
    a("s_nop 0")
    a.c("v84/v86 = rstd, v85/v87 = mean*rstd")
    for g in range(2):
        a(f"v_mul_f32 v{85+2*g}, v{8+g}, v{84+2*g}")
    T = 80
    def norm(c):
        for g in range(2):
            for i in range(4):
                r = X + g*32 + c*4 + i
                t = T + 2*(i & 1)
                a(f"v_lshlrev_b32 v{t}, 16, v{r}")
                a(f"v_and_b32 v{t+1}, 0xffff0000, v{r}")
                a(f"v_pk_fma_f32 {vr(t,2)}, {vr(t,2)}, {vr(84+2*g,2)}, {vr(84+2*g,2)} op_sel:[0,0,1] op_sel_hi:[1,0,1] neg_lo:[0,0,1] neg_hi:[0,0,1]")
                a(f"v_cvt_pk_bf16_f32 v{r}, v{t}, v{t+1}")
            a.lg("xw", f"ds_write_b128 v{6+g}, {vr(X+g*32+c*4,4)} offset:{(c%3)*8192}")
    norm(0)
    issued = UPF
    a(f"""v_mov_b32 v88, -1
    v_mov_b32 v89, -1
    v_mov_b32 v90, -1
    v_mov_b32 v91, -1
    v_lshlrev_b32 v92, 4, v0
    v_mov_b32 v93, 0
    s_lshl2_add_u32 s73, s2, s71
    s_lshl_b32 s73, s73, 12
    s_add_u32 s73, s73, {hex(WS_HN)}""")
    for s in range(8):
        a.wait(vm=("W", s), lg="all")
        a("s_barrier")
        if s < 7:
            norm(s + 1)
        while issued < 8 and issued <= s + 3:
            p1_wdma(a, 4, issued); issued += 1
        if s in (5, 6):
            for i in range(2):
                a.vm("clr", f"buffer_store_dwordx4 v[88:91], v92, {S(sWS)}, s73 offen offset:{(2*(s-5)+i)*1024} sc1")
        if s == 6:
            a.vm("gate", f"buffer_load_dword v94, v93, {S(sM)}, 0 offen sc1")
    a("P1_done:")
    a.vmq = ["any"]; a.lgq = []

TS = 2080
KVB = 114688
STG = 65536
def flag_sync(a, tag, own_hi, own_lo, grp_expr, base, extra_gate, other=None):
    a.wait(vm="all", lg="all")
    a("s_barrier")
    a("s_cmp_lg_u32 s3, 4")
    a(f"s_cbranch_scc1 {tag}_skip")
    if extra_gate:
        a(f"""{tag}_g:
        v_cmp_eq_u32 vcc, 0, v94
        s_cbranch_vccz {tag}_g_ok
        buffer_load_dword v94, v93, {S(sM)}, 0 offen sc1
        s_waitcnt vmcnt(0)
        s_sub_u32 s{BUD}, s{BUD}, 1
        s_cbranch_scc0 {tag}_g
        s_mov_b32 s{BUD}, 0
        {tag}_g_ok:""")
    a(f"""s_lshl_b32 s66, s{own_hi}, 5
    s_add_u32 s66, s66, s{own_lo}
    s_lshl_b32 s66, s66, 7
    s_add_u32 s66, s66, {hex(base)}
    v_mov_b32 v126, 1
    v_mov_b32 v127, 0
    s_mov_b64 exec, 1
    buffer_store_dword v126, v127, {S(sWS)}, s66 offen sc1
    s_mov_b32 exec_lo, -1
    {grp_expr}
    s_lshl_b32 s66, s66, 12
    s_add_u32 s66, s66, {hex(base)}
    v_lshlrev_b32 v127, 7, v0
    {tag}_p:
    buffer_load_dword v126, v127, {S(sWS)}, s66 offen sc1
    s_waitcnt vmcnt(0)
    v_cmp_ne_u32 vcc, 1, v126""")
    spin_tail(a, f"{tag}_p")
    a("s_mov_b64 exec, -1")
    if other:
        a(f"s_branch {tag}_join")
    a(f"{tag}_skip:")
    if other:
        other()
        a(f"{tag}_join:")

def p2(a):
    Q, SS, O, KV = [8, 12], [16, 32], [48, 64], [80, 92]
    a.c("---- P2 setup that needs no LDS (overlaps the store drain)")
    srd(a, sW1, 12, 2048 * 3584)
    a(f"s_cmp_ge_u32 s{J}, 28")
    a(f"s_cselect_b32 s{sW1+2}, 0, s{sW1+2}")
    srd(a, sWO, 8, 512 * 1024)
    srd(a, sW2, 16, 1792 * 4096)
    a(f"""s_lshr_b32 s66, s3, 2
    s_mul_i32 s66, s66, {2*TS}
    s_add_u32 s66, s66, {KVB}
    v_lshlrev_b32 v4, 4, v0
    v_add_u32 v1, s66, v4
    v_and_b32 v5, 15, v0
    v_lshrrev_b32 v6, 5, v0
    v_lshlrev_b32 v6, 8, v6
    v_lshl_add_u32 v5, v5, 4, v6
    v_add_u32 v2, 1024, v5
    v_add_u32 v3, 1536, v5
    v_and_b32 v5, 11, v0
    v_cmp_eq_u32 vcc, 0, v5
    v_mov_b32 v6, 2064
    v_mov_b32 v7, 2048
    v_cndmask_b32 v6, v6, v7, vcc
    v_and_b32 v5, 16, v0
    v_cmp_eq_u32 vcc, 0, v5
    v_mov_b32 v7, 0xdddddddd
    v_lshrrev_b32 v110, 3, v0
    v_cndmask_b32 v2, v6, v2, vcc
    v_cndmask_b32 v3, v6, v3, vcc
    v_add_u32 v2, s66, v2
    v_add_u32 v3, s66, v3""")
    a.c("W1 dma voffsets v5,v6 ; tr addresses v104..107 ; Wo voffset v108 ; w2 touch v109")
    a(f"""v_and_b32 v111, 7, v0
    v_and_b32 v5, 6, v110
    v_xor_b32 v5, v5, v111
    v_lshlrev_b32 v5, 4, v5
    v_mul_u32_u24 v6, 3584, v110
    v_add_u32 v5, v5, v6
    s_mul_i32 s66, s3, {256*3584}
    s_lshl_b32 s67, s{FT}, 7
    s_add_u32 s66, s66, s67
    v_add_u32 v5, s66, v5
    v_add_u32 v6, {8*3584-1024}, v5
    v_lshrrev_b32 v104, 2, v0
    v_bfe_u32 v105, v0, 3, 2
    v_lshlrev_b32 v105, 5, v105
    v_lshl_add_u32 v104, v104, 7, v105
    v_and_b32 v105, 3, v0
    v_lshl_add_u32 v104, v105, 3, v104
    s_mul_i32 s70, s3, 6144
    s_add_u32 s70, s70, {STG}
    v_add_u32 v104, s70, v104
    v_xor_b32 v105, 32, v104
    v_xor_b32 v106, 64, v104
    v_xor_b32 v107, 96, v104
    v_bfe_u32 v108, v110, 1, 1
    v_lshlrev_b32 v108, 2, v108
    v_xor_b32 v108, v108, v111
    v_lshlrev_b32 v108, 4, v108
    v_lshl_add_u32 v108, v110, 10, v108
    s_lshl_b32 s66, s3, 13
    s_lshl_b32 s67, s{DB3}, 7
    s_add_u32 s66, s66, s67
    v_add_u32 v108, s66, v108
    s_lshl_b32 s71, s3, 10""")
    a.c("w2 touch: XCD slice = 1 KB per row; wave covers 7 rows x 8 lines")
    a(f"""v_min_u32 v109, 6, v110
    s_lshl3_add_u32 s66, s{J}, s3
    s_mul_i32 s66, s66, 7
    v_add_u32 v109, s66, v109
    v_lshlrev_b32 v109, 12, v109
    v_lshl_add_u32 v109, v111, 7, v109
    s_lshr_b32 s66, s{XCD}, 1
    s_lshl_b32 s66, s66, 10
    v_add_u32 v109, s66, v109""")
    for i in range(16):
        a(f"v_mov_b32 v{O[0]+i}, 0")
        a(f"v_mov_b32 v{O[1]+i}, 0")
    a.c("KV dma: s72 global offset, s73 LDS offset ; Q: s74")
    a(f"""s_lshl_b32 s72, s{HEAD}, 17
    s_lshr_b32 s66, s3, 2
    s_lshl_b32 s66, s66, 16
    s_add_u32 s72, s72, s66
    s_and_b32 s66, s3, 3
    s_lshl_b32 s67, s66, 10
    s_add_u32 s72, s72, s67
    s_add_u32 s72, s72, {hex(WS_KV)}
    s_lshr_b32 s73, s3, 1
    s_mul_i32 s73, s73, {TS}
    s_and_b32 s67, s3, 1
    s_lshl_b32 s67, s67, 10
    s_add_u32 s73, s73, s67
    s_add_u32 s73, s73, {KVB}
    s_lshl2_add_u32 s75, s{QB}, s66
    s_lshl_b32 s74, s{HEAD}, 16
    s_lshl_b32 s67, s75, 11
    s_add_u32 s74, s74, s67""")
    a.mark(3)
    def ones():
      a.c("ones / zeros chunks behind every tile slot (all P1 LDS reads are behind the barrier above)")
      a(f"""v_mov_b32 v16, 0x3f803f80
    v_mov_b32 v17, 0x3f803f80
    v_mov_b32 v18, 0x3f803f80
    v_mov_b32 v19, 0x3f803f80
    v_and_b32 v20, 15, v0
    v_mul_u32_u24 v20, {TS}, v20
    v_add_u32 v20, {KVB}, v20
    ds_write_b128 v20, v[16:19] offset:2048
    ds_write_b128 v20, {vr(O[0],4)} offset:2064
    s_waitcnt lgkmcnt(0)""")
    flag_sync(a, "F1", HG, TB1, f"s_lshr_b32 s66, s{HEAD}, 2", WS_F1, True, ones)
    a("s_barrier")
    a.mark(4)
    def kvdma(n):
        a(f"s_add_u32 m0, s73, {(n % 4)*4*TS}")
        a("s_nop 0")
        a.vm(("kv", n), f"buffer_load_dwordx4 v4, {S(sWS)}, s72 offen sc1 lds")
        a("s_add_u32 s72, s72, 4096")
    def w1dma(p, i):
        if i == 0:
            a(f"s_add_u32 m0, s70, {(p % 3)*2048}")
            a(f"s_mov_b32 s66, {p*16*3584}")
            a.vm(("w1", p), f"buffer_load_dwordx4 v5, {S(sW1)}, s66 offen{NTW} lds")
        else:
            a(f"s_add_u32 m0, s70, {(p % 3)*2048}")
            a(f"s_mov_b32 s66, {p*16*3584}")
            a.vm(("w1", p), f"buffer_load_dwordx4 v6, {S(sW1)}, s66 offen offset:1024{NTW} lds")
    def w1read(p, fss):
        for fs in fss:
            d = ((p >> 1)*4 + fs)*4 + 2*(p & 1)
            a.lg(("w1", p), f"ds_read_b64_tr_b16 {ar(d,2)}, v{104+fs} offset:{(p % 3)*2048}")
    def wodma(n):
        a(f"s_add_u32 s66, s{DB3}, {n >> 1}")
        a("s_and_b32 s66, s66, 3")
        a("s_lshl_b32 s66, s66, 17")
        a(f"s_add_u32 m0, s71, {n*8192}")
        if n & 1:
            a("s_add_u32 s66, s66, 0x10000")
        else:
            a("s_nop 0")
        a.vm(("wo", n), f"buffer_load_dwordx4 v108, {S(sWO)}, s66 offen{NTW} lds")
    def kvread(T, buf):
        off = ((T >> 1) % 4)*4*TS + (T & 1)*TS
        a.lg(("k", T), f"ds_read_b128 {vr(buf,4)}, v1 offset:{off}")
        a.lg(("k", T), f"ds_read_b128 {vr(buf+4,4)}, v2 offset:{off}")
        a.lg(("k", T), f"ds_read_b128 {vr(buf+8,4)}, v3 offset:{off}")
    kvdma(0)
    a.vm("q", f"buffer_load_dwordx4 {vr(Q[0],4)}, v4, {S(sWS)}, s74 offen sc1")
    a.vm("q", f"buffer_load_dwordx4 {vr(Q[1],4)}, v4, {S(sWS)}, s74 offen offset:1024 sc1")
    for n in range(1, 4):
        kvdma(n)
    a.wait(vm="q")
    a("s_barrier")
    kvread(0, KV[0])
    w1dma(0, 0); w1dma(0, 1)
    a.wait(lg=("k", 0))
    a(f"v_mfma_f32_32x32x16_bf16 {vr(SS[0],16)}, {vr(KV[0],4)}, {vr(Q[0],4)}, 0")
    a.mark(5)
    a("s_nop 11")
    XR = 112
    for T in range(32):
        n, i = T >> 1, T & 1
        cur, oth = KV[T & 1], KV[(T & 1) ^ 1]
        for h in range(2):
            Sx, Sn = SS[h], SS[h ^ 1]
            ex = [f"v_exp_f32 v{Sx+e}, v{Sx+e}" for e in range(16)]
            a(ex[0]); a(ex[1])
            if T or h:
                a(f"v_smfmac_f32_32x32x32_bf16 {vr(O[h^1],16)}, {vr((cur if h else oth)+8,4)}, {vr(Sn+8,8)}, v7")
            if h == 0 and T < 31:
                if i == 1:
                    tags = [("kv", n + 1)] + ([("w1", n - 1)] if n >= 1 else [])
                    a.wait(vm=tags)
                    a("s_barrier")
                kvread(T + 1, oth)
            for e in ex[2:5]: a(e)
            if h == 1 and T < 31:
                a.wait(lg=("k", T + 1))
            if not (T == 31 and h == 1):
                a(f"v_mfma_f32_32x32x16_bf16 {vr(Sn,16)}, {vr(oth if h else cur,4)}, {vr(Q[h^1],4)}, 0")
            for e in ex[5:11]: a(e)
            a(f"v_smfmac_f32_32x32x32_bf16 {vr(O[h],16)}, {vr(cur+4,4)}, {vr(Sx,8)}, v7")
            if i == 1 and h == 0 and n + 4 < 16:
                kvdma(n + 4)
            if i == 1 and h == 1 and 1 <= n <= 14:
                w1read(n - 1, range(4))
            if i == 0 and n + 1 < 16:
                if h == 0:
                    a.wait(lg=("w1", n - 2))
                w1dma(n + 1, h)
            if i == 1 and h == 1:
                if 2 <= n < 10:
                    wodma(n - 2)
                if n == 10:
                    a.vm("touch", f"buffer_load_dword v110, v109, {S(sW2)}, 0 offen{NTT}")
                if n == 11:
                    a.c("warm the bias lines")
                    srd(a, sM, 14, 1792 * 2)
                    srd(a, sWQ, 18, 2048 * 2)
                    a(f"s_lshl_b32 s66, s{FT}, 7")
                    a(f"s_lshl_b32 s67, s{ST}, 7")
                    a.vm("touch", f"buffer_load_dword v110, off, {S(sM)}, s66")
                    a.vm("touch", f"buffer_load_dword v110, off, {S(sWQ)}, s67")
                if n == 13:
                    a.c("x residual for P3 (used by waves 0..3)")
                    a(f"""s_and_b32 s66, s3, 1
                    s_lshl1_add_u32 s66, s{TB3}, s66
                    s_bfe_u32 s67, s3, 0x10001
                    s_lshl1_add_u32 s67, s{DB3}, s67
                    s_lshl_b32 s66, s66, 15
                    s_lshl_b32 s67, s67, 6
                    s_add_u32 s66, s66, s67
                    s_cmp_lt_u32 s3, 4
                    s_cselect_b32 s66, s66, 0x7fffff00
                    v_and_b32 v109, 31, v0
                    v_lshrrev_b32 v111, 5, v0
                    v_lshlrev_b32 v109, 10, v109
                    v_lshl_add_u32 v109, v111, 5, v109""")
                    a.vm("xr", f"buffer_load_dwordx4 {vr(XR,4)}, v109, {S(sX)}, s66 offen")
                    a.vm("xr", f"buffer_load_dwordx4 {vr(XR+4,4)}, v109, {S(sX)}, s66 offen offset:16")
            for e in ex[11:16]: a(e)
    a("s_nop 1")
    a(f"v_smfmac_f32_32x32x32_bf16 {vr(O[1],16)}, {vr(KV[1]+8,4)}, {vr(SS[1]+8,8)}, v7")
    a.mark(6)
    a.c("---- combine the key halves: wave w<4 finishes q-tile A, wave w+4 q-tile B")
    a(f"""s_mul_i32 s66, s3, 2304
    s_add_u32 s66, s66, {KVB}
    s_xor_b32 s67, s3, 4
    s_mul_i32 s67, s67, 2304
    s_add_u32 s67, s67, {KVB}
    v_add_u32 v1, s66, v4
    v_add_u32 v2, s67, v4
    v_lshlrev_b32 v3, 2, v0
    v_add_u32 v16, s66, v3
    v_add_u32 v17, s67, v3
    s_cmp_ge_u32 s3, 4
    s_cbranch_scc1 P2_hi
    s_nop 1
    ds_write_b128 v1, {vr(O[1],4)}
    ds_write_b128 v1, {vr(O[1]+4,4)} offset:1024
    ds_write_b32 v16, v{O[1]+8} offset:2048
    s_branch P2_cm
    P2_hi:
    ds_write_b128 v1, {vr(O[0],4)}
    ds_write_b128 v1, {vr(O[0]+4,4)} offset:1024
    ds_write_b32 v16, v{O[0]+8} offset:2048
    s_waitcnt lgkmcnt(0)""")
    for e in range(9):
        a(f"v_mov_b32 v{O[0]+e}, v{O[1]+e}")
    for e in range(4):
        a(f"v_mov_b32 v{Q[0]+e}, v{Q[1]+e}")
    a(f"""P2_cm:
    s_lshr_b32 s66, s3, 2
    s_lshl1_add_u32 s75, s75, s66
    s_lshl_b32 s66, s75, 15
    s_lshl_b32 s67, s{HEAD}, 10
    s_add_u32 s66, s66, s67
    s_add_u32 s74, s66, {hex(WS_O)}
    s_waitcnt lgkmcnt(0)
    s_barrier
    ds_read_b32 v28, v17 offset:2048
    ds_read_b128 v[20:23], v2
    ds_read_b128 v[24:27], v2 offset:1024
    s_mov_b32 s66, {f32(2.0**-64)}
    s_mov_b32 s67, {f32(2.0**64)}
    s_waitcnt lgkmcnt(2)
    v_add_f32 v{O[0]+8}, v{O[0]+8}, v28
    v_cmp_nle_f32 vcc, s66, v{O[0]+8}
    v_cmp_nge_f32 s[68:69], s67, v{O[0]+8}
    s_waitcnt lgkmcnt(0)""")
    for e in range(4):
        a(f"v_pk_add_f32 {vr(O[0]+2*e,2)}, {vr(O[0]+2*e,2)}, {vr(20+2*e,2)}")
    a.c("row sums outside [2^-64, 2^64] (or NaN): redo this q-tile with the true row maximum")
    a("s_or_b64 vcc, vcc, s[68:69]")
    a("s_cbranch_vccnz P2_slow")
    a("P2_fin:")
    a(f"v_rcp_f32 v28, v{O[0]+8}")
    a("s_nop 0")
    for e in range(4):
        a(f"v_pk_mul_f32 {vr(O[0]+2*e,2)}, {vr(O[0]+2*e,2)}, v[28:29] op_sel_hi:[1,0]")
    for e in range(4):
        a(f"v_cvt_pk_bf16_f32 v{20+e}, v{O[0]+2*e}, v{O[0]+2*e+1}")
    a.vm("o", f"buffer_store_dwordx4 v[20:23], v4, {S(sWS)}, s74 offen sc1")
    a.lgq = []
    a.wait(vm=("w1", 15))
    w1read(14, range(4)); w1read(15, range(4))
    b = Prog()
    Sx, C, K = SS[0], SS[1], KV[0]
    b(f"""P2_slow:
    s_lshl_b32 s66, s{HEAD}, 17
    s_add_u32 s66, s66, {hex(WS_KV)}
    s_mov_b32 s67, s66
    s_add_u32 s68, s66, 0x20000
    v_mov_b32 v64, 0xff800000
    P2_s1:
    buffer_load_dwordx4 {vr(K,4)}, v4, {S(sWS)}, s67 offen sc1
    s_add_u32 s67, s67, 2048
    s_waitcnt vmcnt(0)
    v_mfma_f32_32x32x16_bf16 {vr(Sx,16)}, {vr(K,4)}, {vr(Q[0],4)}, 0
    s_nop 11""")
    for e in range(8):
        b(f"v_max3_f32 v64, v64, v{Sx+2*e}, v{Sx+2*e+1}")
    b(f"""s_cmp_lt_u32 s67, s68
    s_cbranch_scc1 P2_s1
    v_mov_b32 v65, v64
    s_nop 1
    v_permlane32_swap_b32 v64, v65
    s_nop 1
    v_max_f32 v64, v64, v65
    v_and_b32 v1, 15, v0
    v_lshrrev_b32 v2, 5, v0
    v_lshlrev_b32 v2, 8, v2
    v_lshl_add_u32 v1, v1, 4, v2""")
    for e in range(16):
        b(f"v_sub_f32 v{C+e}, 0, v64")
        b(f"v_mov_b32 v{O[0]+e}, 0")
    for e in range(8):
        b(f"v_mov_b32 v{K+4+e}, 0x3f803f80")
    b(f"""s_mov_b32 s67, s66
    P2_s2:
    buffer_load_dwordx4 {vr(K,4)}, v4, {S(sWS)}, s67 offen sc1
    s_mov_b32 exec_lo, 0xffff
    s_mov_b32 exec_hi, 0xffff
    buffer_load_dwordx4 {vr(K+4,4)}, v1, {S(sWS)}, s67 offen offset:1024 sc1
    buffer_load_dwordx4 {vr(K+8,4)}, v1, {S(sWS)}, s67 offen offset:1536 sc1
    s_mov_b64 exec, -1
    s_add_u32 s67, s67, 2048
    s_waitcnt vmcnt(0)
    v_mfma_f32_32x32x16_bf16 {vr(Sx,16)}, {vr(K,4)}, {vr(Q[0],4)}, {vr(C,16)}
    s_nop 11""")
    for e in range(16):
        b(f"v_exp_f32 v{Sx+e}, v{Sx+e}")
    b(f"""s_nop 1
    v_smfmac_f32_32x32x32_bf16 {vr(O[0],16)}, {vr(K+4,4)}, {vr(Sx,8)}, v7
    v_smfmac_f32_32x32x32_bf16 {vr(O[0],16)}, {vr(K+8,4)}, {vr(Sx+8,8)}, v7
    s_cmp_lt_u32 s67, s68
    s_cbranch_scc1 P2_s2
    s_nop 11
    s_branch P2_fin""")
    a.ool += b.L

RED = 98304
TRB = 147456
def w2_setup(a, vo):
    a(f"""v_lshrrev_b32 v{vo}, 3, v0
    v_and_b32 v{vo+1}, 2, v{vo}
    v_lshlrev_b32 v{vo}, 12, v{vo}
    v_xor_b32 v{vo+1}, v{vo+1}, v0
    v_and_b32 v{vo+1}, 7, v{vo+1}
    v_lshl_add_u32 v{vo}, v{vo+1}, 4, v{vo}
    s_lshl_b32 s66, s{ST}, 7
    v_add_u32 v{vo}, s66, v{vo}
    v_xor_b32 v{vo+1}, 64, v{vo}
    v_add_u32 v{vo+1}, {8*4096-1024}, v{vo+1}""")
def w2dma(a, vo, sg, sl, e, slot):
    for half in range(2):
        a(f"s_add_u32 m0, s{sl}, {slot*4096 + half*2048}")
        a(f"s_add_u32 s66, s{sg}, {(32*e + 16*half)*4096}")
        a.vm(("w2", e), f"buffer_load_dwordx4 v{vo}, {S(sW2)}, s66 offen lds")
        a.vm(("w2", e), f"buffer_load_dwordx4 v{vo+1}, {S(sW2)}, s66 offen offset:1024 lds")
W2V = 64
def w2reg(e, ss, n=4, off=0):
    return vr(W2V + 4*ss + off, n) if e == 0 else ar(16*(e-1) + 4*ss + off, n)
def w2read(a, e, slot):
    for ss in range(4):
        for q in range(2):
            a.lg(("w2", e), f"ds_read_b64_tr_b16 {w2reg(e, ss, 2, 2*q)}, v{12+ss} offset:{slot*4096 + q*512}")

def p3(a):
    ACC, WR, AB, XR = 16, 32, [96, 112], 112
    a("s_cmp_ge_u32 s3, 4")
    a("s_cbranch_scc1 P3_pre_h")
    a.c("compute waves: accumulator = x residual, first 16 Wo fragments into registers")
    a(f"""v_bfe_u32 v6, v0, 2, 2
    v_lshrrev_b32 v11, 5, v0
    v_lshl_add_u32 v7, v11, 2, v6
    v_lshlrev_b32 v7, 7, v7
    v_and_b32 v8, 1, v0
    v_lshlrev_b32 v8, 2, v8
    v_bfe_u32 v9, v0, 4, 1
    v_lshl_add_u32 v8, v9, 1, v8
    v_bfe_u32 v9, v0, 1, 1
    v_add_u32 v8, v8, v9
    s_lshr_b32 s66, s3, 1
    s_lshl_b32 s66, s66, 3
    v_add_u32 v8, s66, v8
    v_lshrrev_b32 v9, 1, v6
    v_lshlrev_b32 v9, 3, v9
    v_xor_b32 v8, v8, v9
    v_lshl_add_u32 v5, v8, 3, v7
    s_and_b32 s66, s3, 1
    s_lshl_b32 s66, s66, 15
    s_add_u32 s66, s66, 65536
    v_add_u32 v3, s66, v4
    v_and_b32 v10, 31, v0""")
    def wread(k):
        for q in range(2):
            a.lg(("wo", k), f"ds_read_b64_tr_b16 {vr(WR+4*(k%16)+2*q,2)}, v5 offset:{k*2048+q*1024}")
    for k in range(16):
        wread(k)
    for i in range(8):
        unpack(a, ACC + 2*i, XR + i)
    a("P3_pre_h:")
    a.mark(7)
    flag_sync(a, "F2", QB, HEAD, f"s_lshr_b32 s66, s{TB3}, 2", WS_F2, False)
    a("s_barrier")
    a.mark(8)
    a("s_cmp_ge_u32 s3, 4")
    a("s_cbranch_scc1 P3_helper")
    def aread(k):
        a.lg(("a", k), f"ds_read_b128 {vr(AB[(k>>2)&1]+4*(k&3),4)}, v3 offset:{k*1024}")
    def mf(k):
        a.wait(lg=[("a", k), ("wo", k)])
        a(f"v_mfma_f32_32x32x16_bf16 {vr(ACC,16)}, {vr(WR+4*(k%16),4)}, {vr(AB[(k>>2)&1]+4*(k&3),4)}, {vr(ACC,16)}")
        if k < 16:
            wread(k + 16)
    for g in range(9):
        if g < 8:
            if g % 2 == 0:
                a("s_barrier")
            for k in range(4*g, 4*g + 4):
                aread(k)
        if g == 8:
            a.wait(lg="all")
            a("s_barrier")
        if g >= 1:
            for k in range(4*(g-1), 4*g):
                mf(k)
    a.c("tile=s71, dt=s72")
    a(f"""s_and_b32 s66, s3, 1
    s_lshl1_add_u32 s71, s{TB3}, s66
    s_lshr_b32 s67, s3, 1
    s_lshl1_add_u32 s72, s{DB3}, s67
    v_lshlrev_b32 v12, 3, v10
    s_lshl_b32 s73, s71, 12
    s_add_u32 s73, s73, {hex(WS_ST)}
    s_lshl_b32 s68, s72, 8
    s_add_u32 s68, s68, s73
    s_lshl3_add_u32 s69, s{TB3}, s{DB3}
    s_lshl_b32 s69, s69, 13
    s_lshl_b32 s67, s67, 12
    s_add_u32 s69, s69, s67
    s_lshl_b32 s66, s66, 10
    s_add_u32 s69, s69, s66
    s_add_u32 s69, s69, {hex(WS_HR)}""")
    a(f"v_pk_add_f32 v[6:7], {vr(ACC,2)}, {vr(ACC+2,2)}")
    a(f"v_pk_mul_f32 v[8:9], {vr(ACC,2)}, {vr(ACC,2)}")
    a(f"v_pk_fma_f32 v[8:9], {vr(ACC+2,2)}, {vr(ACC+2,2)}, v[8:9]")
    for i in range(2, 8):
        a(f"v_pk_add_f32 v[6:7], v[6:7], {vr(ACC+2*i,2)}")
        a(f"v_pk_fma_f32 v[8:9], {vr(ACC+2*i,2)}, {vr(ACC+2*i,2)}, v[8:9]")
    a(f"""v_add_f32 v6, v6, v7
    v_add_f32 v7, v8, v9
    v_mov_b32 v8, v6
    v_mov_b32 v9, v7
    s_nop 1
    v_permlane32_swap_b32 v6, v8
    v_permlane32_swap_b32 v7, v9
    s_nop 1
    v_add_f32 v6, v6, v8
    v_add_f32 v7, v7, v9
    v_and_b32 v7, 0x7fffffff, v7
    s_mov_b32 exec_hi, 0
    buffer_store_dwordx2 v[6:7], v12, {S(sWS)}, s68 offen sc1
    s_mov_b32 exec_hi, -1""")
    a.mark(9)
    T = 32
    for i in range(8):
        a(f"v_cvt_pk_bf16_f32 v{T+i}, v{ACC+2*i}, v{ACC+2*i+1}")
    a(f"""v_and_b32 v13, 15, v0
    v_lshlrev_b32 v13, 4, v13
    v_bfe_u32 v14, v0, 4, 1
    v_lshl_add_u32 v13, v14, 9, v13
    v_lshl_add_u32 v13, v11, 11, v13
    buffer_store_dwordx4 {vr(T,4)}, v13, {S(sWS)}, s69 offen sc1
    buffer_store_dwordx4 {vr(T+4,4)}, v13, {S(sWS)}, s69 offen offset:256 sc1
    v_lshl_add_u32 v12, v11, 11, v12
    s_lshl_b32 s66, s3, 11
    s_add_u32 s66, s66, {TRB}
    v_lshlrev_b32 v1, 6, v10
    v_lshl_add_u32 v1, v11, 5, v1
    v_add_u32 v1, s66, v1
    v_lshrrev_b32 v2, 2, v0
    v_lshlrev_b32 v2, 6, v2
    v_and_b32 v14, 3, v0
    v_lshl_add_u32 v2, v14, 3, v2
    v_add_u32 v2, s66, v2
    s_lshl_b32 s69, s72, 17
    s_lshl_b32 s67, s71, 10
    s_add_u32 s69, s69, s67
    s_add_u32 s69, s69, {hex(WS_HN)}
    s_add_u32 s68, s69, 0x10000""")
    P = 48
    a("P3_poll:")
    for i in range(8):
        a(f"buffer_load_dwordx2 {vr(P+2*i,2)}, v12, {S(sWS)}, s73 offen offset:{i*256} sc1")
    a(f"""s_waitcnt vmcnt(0)
    v_or3_b32 v6, v{P+1}, v{P+3}, v{P+5}
    v_or3_b32 v7, v{P+7}, v{P+9}, v{P+11}
    v_or3_b32 v6, v6, v{P+13}, v{P+15}
    v_or_b32 v6, v6, v7
    v_cmp_gt_i32 vcc, 0, v6""")
    spin_tail(a, "P3_poll")
    a.mark(10)
    a(f"v_pk_add_f32 v[6:7], {vr(P,2)}, {vr(P+2,2)}")
    a(f"v_pk_add_f32 v[8:9], {vr(P+4,2)}, {vr(P+6,2)}")
    a(f"v_pk_add_f32 v[6:7], v[6:7], {vr(P+8,2)}")
    a(f"v_pk_add_f32 v[8:9], v[8:9], {vr(P+10,2)}")
    a(f"v_pk_add_f32 v[6:7], v[6:7], {vr(P+12,2)}")
    a(f"v_pk_add_f32 v[8:9], v[8:9], {vr(P+14,2)}")
    a(f"""v_pk_add_f32 v[6:7], v[6:7], v[8:9]
    s_mov_b32 s66, {f32(1/512)}
    v_mov_b32 v8, v6
    v_mov_b32 v9, v7
    s_mov_b32 s67, {f32(1+EPS)}
    v_mov_b32 v14, {f32(EPS*EPS)}
    v_permlane32_swap_b32 v6, v8
    v_permlane32_swap_b32 v7, v9
    s_nop 1
    v_add_f32 v6, v6, v8
    v_add_f32 v7, v7, v9
    v_mul_f32 v6, s66, v6
    v_mul_f32 v7, s66, v7
    v_fma_f32 v7, -v6, v6, v7
    v_max_f32 v7, 0, v7
    v_fma_f32 v7, v7, s67, v14
    v_rsq_f32 v8, v7
    s_nop 0
    v_mul_f32 v9, v6, v8""")
    for half in range(2):
        for i in range(4*half, 4*half + 4):
            a(f"v_pk_fma_f32 {vr(ACC+2*i,2)}, {vr(ACC+2*i,2)}, v[8:9], v[8:9] op_sel:[0,0,1] op_sel_hi:[1,0,1] neg_lo:[0,0,1] neg_hi:[0,0,1]")
        for i in range(4*half, 4*half + 4):
            a(f"v_cvt_pk_bf16_f32 v{P+i}, v{ACC+2*i}, v{ACC+2*i+1}")
        a(f"ds_write_b128 v1, {vr(P+4*half,4)} offset:{16*half}")
    a("s_waitcnt lgkmcnt(0)")
    for u in range(2):
        for q in range(2):
            a(f"ds_read_b64_tr_b16 {vr(P+8+4*u+2*q,2)}, v2 offset:{q*1024+u*32}")
    a(f"""s_waitcnt lgkmcnt(2)
    buffer_store_dwordx4 {vr(P+8,4)}, v4, {S(sWS)}, s69 offen sc1
    s_waitcnt lgkmcnt(0)
    buffer_store_dwordx4 {vr(P+12,4)}, v4, {S(sWS)}, s68 offen sc1""")
    w2_setup(a, 8)
    a("s_branch P3_done")
    a("P3_helper:")
    a.vmq = []; a.lgq = []
    a(f"""s_and_b32 s66, s3, 1
    s_bfe_u32 s67, s3, 0x10001
    s_lshl_b32 s71, s66, 15
    s_lshl_b32 s67, s67, 12
    s_add_u32 s71, s71, s67
    s_lshl_b32 s72, s{TB3}, 16
    s_add_u32 s72, s72, s71
    s_add_u32 s72, s72, {hex(WS_O)}
    s_add_u32 s71, s71, 65536""")
    def odma(c):
        a(f"""s_add_u32 s66, s{DB3}, {c}
        s_and_b32 s66, s66, 3
        s_lshl_b32 s66, s66, 13
        s_add_u32 m0, s71, {c*8192}
        s_add_u32 s66, s66, s72""")
        for i in range(4):
            a.vm(("o", c), f"buffer_load_dwordx4 v4, {S(sWS)}, s66 offen offset:{i*1024} sc1 lds")
    odma(0); odma(1)
    for c in range(4):
        if c < 2:
            pass
        a.wait(vm=("o", c))
        a("s_barrier")
        if c < 2:
            odma(c + 2)
    w2_setup(a, 8)
    a(f"""s_sub_u32 s67, s3, 4
    s_mul_i32 s71, s67, {2*224*4096}
    s_mul_i32 s72, s67, {2*12288}
    s_add_u32 s73, s71, {224*4096}
    s_add_u32 s74, s72, 12288""")
    a("s_barrier")
    for e in range(2):
        w2dma(a, 8, 71, 72, e, e)
        w2dma(a, 8, 73, 74, e, e)
    a.wait(vm="all")
    a("P3_done:")
    a.vmq = ["hn"]; a.lgq = []
    a("s_barrier")
    a.mark(11)

def gemm_phase(a, tag, nk, base, rotreg, wreg, act_is_B, extra, finish):
    RING, ACCS, RT = 32, [16, 96], 80
    ustr = nk * 8 * 1024
    for u in range(4):
        a(f"s_add_u32 s66, s{rotreg}, {u}")
        a("s_and_b32 s66, s66, 3")
        a(f"s_mov_b32 s{4+u}, s66" if False else f"s_mul_i32 s{72+u}, s66, {ustr}")
        a(f"s_add_u32 s{72+u}, s{72+u}, s70")
    a.c("sample the last dword of every fragment this wave will read")
    a(f"""v_and_b32 v1, 7, v0
    v_min_u32 v1, {nk-1}, v1
    v_lshlrev_b32 v1, 10, v1
    v_bfe_u32 v2, v0, 3, 2
    v_mul_u32_u24 v2, {ustr}, v2
    v_add_u32 v1, v1, v2
    v_lshrrev_b32 v2, 5, v0
    v_lshl_add_u32 v1, v2, 9, v1
    {tag}_p:
    buffer_load_dword v2, v1, {S(sWS)}, s70 offen offset:508 sc1
    s_waitcnt vmcnt(0)
    v_cmp_eq_u32 vcc, -1, v2""")
    spin_tail(a, f"{tag}_p")
    a.vmq = []
    a.mark(12 if tag == "P4" else 15)
    def ld(u, k, track=True):
        v = "v4" if k < 4 else "v5"
        ins = f"buffer_load_dwordx4 {vr(RING+4*k,4)}, {v}, {S(sWS)}, s{72+u} offen offset:{(k&3)*1024} sc1"
        if track:
            a.vm(("a", u, k), ins)
        return ins
    for k in range(nk):
        ld(0, k)
    extra("start", 0, 0)
    def red_write(u):
        for fs in range(4):
            a.lg(("rw", u), f"ds_write_b128 v6, {vr(ACCS[u&1]+4*fs,4)} offset:{(u&1)*32768+fs*1024}")
    def red_read(u):
        a.wait(lg="all")
        a("s_barrier")
        for w in range(8):
            a.lg(("rr", u, w), f"ds_read_b64 {vr(RT+2*w,2)}, v7 offset:{(u&1)*32768+w*4096}")
    def red_fin(u):
        a.wait(lg=("rr", u, 3))
        a(f"v_pk_add_f32 {vr(RT,2)}, {vr(RT,2)}, {vr(RT+2,2)}")
        a(f"v_pk_add_f32 {vr(RT+4,2)}, {vr(RT+4,2)}, {vr(RT+6,2)}")
        a.wait(lg=("rr", u, 7))
        a(f"v_pk_add_f32 {vr(RT+8,2)}, {vr(RT+8,2)}, {vr(RT+10,2)}")
        a(f"v_pk_add_f32 {vr(RT+12,2)}, {vr(RT+12,2)}, {vr(RT+14,2)}")
        a(f"v_pk_add_f32 {vr(RT,2)}, {vr(RT,2)}, {vr(RT+4,2)}")
        a(f"v_pk_add_f32 {vr(RT+8,2)}, {vr(RT+8,2)}, {vr(RT+12,2)}")
        a(f"v_pk_add_f32 {vr(RT,2)}, {vr(RT,2)}, {vr(RT+8,2)}")
        finish(u, RT)
    for u in range(4):
        acc = ACCS[u & 1]
        for k in range(nk):
            f = RING + 4*k
            a.wait(vm=("a", u, k))
            lbl = f"{tag}_c{u}_{k}"
            a(f"v_cmp_eq_u32 vcc, -1, v{f+3}")
            a(f"s_cbranch_vccnz {lbl}_r")
            a(f"{lbl}:")
            a.ool += [f"{lbl}_r:", "    " + ld(u, k, False), "    s_waitcnt vmcnt(0)", f"    v_cmp_eq_u32 vcc, -1, v{f+3}",
                      f"    s_cbranch_vccz {lbl}", f"    s_sub_u32 s{BUD}, s{BUD}, 1", f"    s_cbranch_scc0 {lbl}_r",
                      f"    s_mov_b32 s{BUD}, 0", f"    s_branch {lbl}"]
            extra("pre", u, k)
            for fs in range(4):
                c = vr(acc + 4*fs, 4) if k else "0"
                A, B = (wreg(k, fs), vr(f, 4)) if act_is_B else (vr(f, 4), wreg(k, fs))
                a(f"v_mfma_f32_16x16x32_bf16 {vr(acc+4*fs,4)}, {A}, {B}, {c}")
            if u < 3:
                ld(u + 1, k)
            if u >= 1:
                if k == 0:
                    a("s_nop 1")
                    red_write(u - 1)
                if k == 2: red_read(u - 1)
                if k == 4: red_fin(u - 1)
            extra("post", u, k)
    a("s_nop 4")
    red_write(3)
    a.mark(13 if tag == "P4" else 16)
    red_read(3)
    red_fin(3)

def p45(a):
    a.c("---- common P4/P5 addresses")
    a(f"""v_add_u32 v5, 4096, v4
    v_bfe_u32 v1, v0, 4, 1
    v_lshlrev_b32 v1, 3, v1
    v_xor_b32 v1, v1, v0
    s_lshl_b32 s66, s3, 12
    s_add_u32 s66, s66, {RED}
    v_lshl_add_u32 v6, v1, 4, s66
    v_bfe_u32 v1, v0, 1, 1
    v_mul_u32_u24 v1, 24, v1
    v_lshrrev_b32 v2, 2, v0
    v_xor_b32 v1, v1, v2
    v_lshlrev_b32 v1, 4, v1
    v_and_b32 v2, 1, v0
    v_lshl_add_u32 v1, v2, 3, v1
    s_lshl_b32 s66, s3, 9
    s_add_u32 s66, s66, {RED}
    v_add_u32 v7, s66, v1
    v_lshlrev_b32 v3, 2, v0""")
    a.c("W2 tr addresses v12..15")
    a(f"""v_lshrrev_b32 v1, 4, v0
    v_bfe_u32 v2, v0, 2, 2
    v_lshl_add_u32 v12, v1, 3, v2
    v_lshlrev_b32 v12, 7, v12
    v_bfe_u32 v1, v0, 3, 2
    v_lshl_add_u32 v12, v1, 5, v12
    v_and_b32 v1, 3, v0
    v_lshl_add_u32 v12, v1, 3, v12
    s_mul_i32 s76, s3, {224*4096}
    s_mul_i32 s77, s3, 12288
    v_add_u32 v12, s77, v12
    v_xor_b32 v13, 32, v12
    v_xor_b32 v14, 64, v12
    v_xor_b32 v15, 96, v12""")
    w2read(a, 0, 0)
    w2dma(a, 8, 76, 77, 2, 2)
    a.c("biases: b1 pair -> v[112:113], b2 -> v114")
    a(f"""v_and_b32 v1, 3, v0
    v_lshlrev_b32 v1, 2, v1
    s_lshl3_add_u32 s67, s{FT}, s3
    s_lshl_b32 s67, s67, 4
    v_lshrrev_b32 v2, 2, v0
    v_lshlrev_b32 v2, 1, v2
    s_lshr_b32 s68, s3, 1
    s_lshl2_add_u32 s68, s{ST}, s68
    s_lshl_b32 s68, s68, 5""")
    a.wait(lg="all")
    w2dma(a, 8, 76, 77, 3, 0)
    a.vm("b", f"buffer_load_dword v113, v1, {S(sM)}, s67 offen")
    a.vm("b", f"buffer_load_ushort v114, v2, {S(sWQ)}, s68 offen")
    a(f"s_cmp_ge_u32 s{J}, 28")
    a("s_cbranch_scc1 P4_idle")
    a(f"""s_lshl_b32 s70, s{DB5}, 18
    s_lshl_b32 s66, s3, 13
    s_add_u32 s70, s70, s66
    s_add_u32 s70, s70, {hex(WS_HN)}
    s_mul_i32 s71, s{DB5}, {4*56*1024}
    s_lshl3_add_u32 s66, s{FT}, s3
    s_lshl_b32 s66, s66, 8
    s_add_u32 s71, s71, s66
    s_add_u32 s71, s71, {hex(WS_U)}""")
    c0 = -2 * LOG2E * math.sqrt(2 / math.pi)
    def extra4(when, u, k):
        if when == "start":
            a(f"""v_lshlrev_b32 v112, 16, v113
            v_and_b32 v113, 0xffff0000, v113
            v_mov_b32 v116, {f32(c0*0.044715)}
            v_mov_b32 v117, {f32(c0)}""")
        if when == "post" and u == 3:
            if k in (1, 2, 3):
                w2read(a, k, (1, 2, 0)[k - 1])
            if k == 5:
                a.wait(lg=("w2", 3))
                w2dma(a, 8, 76, 77, 4, 1)
    def fin4(u, R):
        a(f"""v_pk_add_f32 {vr(R,2)}, {vr(R,2)}, v[112:113]
        s_add_u32 s66, s{FT}, {u}
        s_and_b32 s66, s66, 3
        v_pk_mul_f32 {vr(R+2,2)}, {vr(R,2)}, {vr(R,2)}
        s_mul_i32 s66, s66, {56*1024}
        v_pk_fma_f32 {vr(R+2,2)}, {vr(R+2,2)}, v[116:117], v[116:117] op_sel:[0,0,1] op_sel_hi:[1,0,1]
        s_add_u32 s66, s66, s71
        v_pk_mul_f32 {vr(R+2,2)}, {vr(R+2,2)}, {vr(R,2)}
        v_exp_f32 v{R+2}, v{R+2}
        v_exp_f32 v{R+3}, v{R+3}
        v_add_f32 v{R+2}, 1.0, v{R+2}
        v_add_f32 v{R+3}, 1.0, v{R+3}
        v_rcp_f32 v{R+2}, v{R+2}
        v_rcp_f32 v{R+3}, v{R+3}
        s_nop 0
        v_pk_mul_f32 {vr(R,2)}, {vr(R,2)}, {vr(R+2,2)}
        v_cvt_pk_bf16_f32 v120, v{R}, v{R+1}
        s_mov_b32 s68, 0x11111111
        s_mov_b32 s69, 0x11111111
        v_mov_b32_dpp v121, v120 quad_perm:[1,1,1,1] row_mask:0xf bank_mask:0xf
        v_mov_b32_dpp v122, v120 quad_perm:[2,2,2,2] row_mask:0xf bank_mask:0xf
        v_mov_b32_dpp v123, v120 quad_perm:[3,3,3,3] row_mask:0xf bank_mask:0xf
        s_mov_b64 exec, s[68:69]""")
        a.vm("ust", f"buffer_store_dwordx4 v[120:123], v3, {S(sWS)}, s66 offen sc1")
        a("s_mov_b64 exec, -1")
    gemm_phase(a, "P4", 8, WS_HN, FT, lambda k, fs: ar(16*k + 4*fs, 4), True, extra4, fin4)
    a.mark(14)
    a("s_branch P4_done")
    a("P4_idle:")
    sv = list(a.vmq)
    a.wait(vm="all")
    for e, slot in ((1, 1), (2, 2), (3, 0)):
        w2read(a, e, slot)
        a.wait(lg="all")
    w2dma(a, 8, 76, 77, 4, 1)
    a("P4_done:")
    a.vmq = [("w2", 4)]*4 + ["ust"]; a.lgq = []
    w2dma(a, 8, 76, 77, 5, 2)
    w2dma(a, 8, 76, 77, 6, 0)
    srd(a, sM, 20, 2048 * 1024)
    a(f"""s_mul_i32 s70, s{DB5}, {4*56*1024}
    s_mul_i32 s66, s3, 7168
    s_add_u32 s70, s70, s66
    s_add_u32 s70, s70, {hex(WS_U)}
    s_lshl3_add_u32 s71, s{ST}, s{DB5}
    s_lshl_b32 s71, s71, 13
    s_lshl_b32 s66, s3, 8
    s_add_u32 s71, s71, s66
    s_add_u32 s71, s71, {hex(WS_HR)}
    v_lshrrev_b32 v10, 2, v0
    v_lshlrev_b32 v10, 10, v10
    v_and_b32 v11, 3, v0
    v_lshl_add_u32 v10, v11, 2, v10
    s_lshr_b32 s66, s3, 1
    s_lshl2_add_u32 s66, s{ST}, s66
    s_lshl_b32 s66, s66, 14
    s_lshl_b32 s67, s{DB5}, 7
    s_add_u32 s66, s66, s67
    s_and_b32 s67, s3, 1
    s_lshl_b32 s67, s67, 4
    s_add_u32 s66, s66, s67
    v_add_u32 v10, s66, v10
    v_lshlrev_b32 v114, 16, v114""")
    def extra5(when, u, k):
        if when == "start":
            for e, slot in ((4, 1), (5, 2), (6, 0)):
                w2read(a, e, slot)
        if when == "pre" and u == 0 and k >= 4:
            a.wait(lg=("w2", k))
        if when == "post" and k == 0:
            a(f"""s_add_u32 s66, s{ST}, {u}
            s_and_b32 s66, s66, 3
            s_lshl_b32 s66, s66, 11
            s_add_u32 s66, s66, s71""")
            a.vm(("hr", u), f"buffer_load_dword v{116+u}, v3, {S(sWS)}, s66 offen sc1")
    def fin5(u, R):
        a.wait(vm=("hr", u))
        a(f"""v_lshlrev_b32 v{R+2}, 16, v{116+u}
        v_and_b32 v{R+3}, 0xffff0000, v{116+u}
        v_pk_add_f32 {vr(R,2)}, {vr(R,2)}, v[114:115] op_sel_hi:[1,0]
        s_add_u32 s66, s{ST}, {u}
        v_pk_add_f32 {vr(R,2)}, {vr(R,2)}, {vr(R+2,2)}
        s_and_b32 s66, s66, 3
        s_lshl_b32 s66, s66, 5
        v_cvt_pk_bf16_f32 v{120+u}, v{R}, v{R+1}""")
        a.vm("out", f"buffer_store_dword v{120+u}, v10, {S(sM)}, s66 offen")
    gemm_phase(a, "P5", 7, WS_U, ST, lambda k, ss: w2reg(k, ss), False, extra5, fin5)

def epilogue(a):
    if STAMP:
        a.mark(17)
        a("s_waitcnt vmcnt(0)")
        a.mark(18)
        a(f"""s_memtime s[76:77]
        s_waitcnt lgkmcnt(0)
        s_sub_u32 s{MK+20}, s76, s{MK+20}
        s_getreg_b32 s{MK+19}, hwreg(HW_REG_XCC_ID)
        s_lshl3_add_u32 s66, s2, s3
        s_lshl_b32 s66, s66, 7
        s_add_u32 s66, s66, {hex(WS_STAMP)}
        s_mov_b64 exec, 1
        v_mov_b32 v1, 0""")
        for i in range(21):
            a(f"v_mov_b32 v2, s{MK+i}")
            a(f"buffer_store_dword v2, v1, {S(sWS)}, s66 offen offset:{4*i}")
    a("L_end:")
    a("s_endpgm")

def build():
    a = Prog()
    kernel_begin(a, NAME + "_kernel")
    prologue(a)
    if STAMP:
        for i in range(1, 19):
            a(f"s_mov_b32 s{MK+i}, 0")
    p1(a); p2(a); p3(a); p45(a); epilogue(a)
    a.L += a.ool
    hdr = "; @launch grid=(256,1,1) block=(512,1,1) lds=163840\n" + '.amdgcn_target "amdgcn-amd-amdhsa--gfx950"\n.text\n'
    return hdr + a.text() + '.section .rodata,"a"\n' + kernel_desc(NAME + "_kernel", 256, 102, 128)

if __name__ == "__main__":
    out = sys.argv[1] if len(sys.argv) > 1 else f"cdna_kernels/{NAME}.s"
    open(out, "w").write(build())
```
